```python
import torch

def _softmax(x, axis=-1):
    return torch.softmax(x, dim=axis)
def _gelu(x):
    return torch.nn.functional.gelu(x, approximate="tanh")
def _silu(x):
    return torch.nn.functional.silu(x)
def _sigmoid(x):
    return torch.sigmoid(x)
def _layernorm(x, axis=-1, eps=1e-5):
    m = x.mean(dim=axis, keepdim=True)
    v = x.var(dim=axis, keepdim=True, unbiased=False)
    return (x - m) / torch.sqrt(v + eps)
def _scatter_add(tgt, idx, src, axis=0):
    return tgt.clone().index_add_(axis, idx, src)
def _segment_sum(src, seg, n):
    out = torch.zeros((n,) + src.shape[1:], dtype=src.dtype)
    return out.index_add_(0, seg, src)
def _pad(x, pw):
    flat = tuple(v for pair in reversed(pw) for v in pair)
    return torch.nn.functional.pad(x, flat)

kernel_name = 'gated_mix__ssm_conv_s4__dense_activation_silu__prompt'

def setup_inputs():

    _w = (lambda a: (lambda t: t.to(torch.bfloat16) if t.is_floating_point() else t)(torch.as_tensor(a)))
    def _A_setup():
        B, L, D, N = 1, 2048, 512, 128
        A_re = -(lambda _x: torch.exp(torch.as_tensor(_x)))((lambda *s: torch.randn(*s, dtype=torch.bfloat16) * 6.4)(D, N))
        A_im = torch.pi * (lambda *s: torch.randn(*s, dtype=torch.bfloat16) * 0.05)(D, N)
        B_re = (lambda *s: torch.randn(*s, dtype=torch.bfloat16) * 0.2)(D, N)
        B_im = (lambda *s: torch.randn(*s, dtype=torch.bfloat16) * 0.2)(D, N)
        C_re = (lambda *s: torch.randn(*s, dtype=torch.bfloat16) * 0.2)(D, N)
        C_im = (lambda *s: torch.randn(*s, dtype=torch.bfloat16) * 0.2)(D, N)
        log_dt = (lambda *s: torch.randn(*s, dtype=torch.bfloat16) * 0.05)(D) * 0.5 - 4.0
        Dskip = (lambda *s: torch.randn(*s, dtype=torch.bfloat16) * 0.05)(D)
        return {
            "u": _w((lambda *s: torch.randn(*s, dtype=torch.bfloat16) * 0.05)(B, L, D)),
            "A_re": _w(A_re),
            "A_im": _w(A_im),
            "B_re": _w(B_re),
            "B_im": _w(B_im),
            "C_re": _w(C_re),
            "C_im": _w(C_im),
            "log_dt": _w(log_dt),
            "Dskip": _w(Dskip),
        }
    _A_in = _A_setup()

    def _B_setup():
        B, S, D, F = 1, 2048, 512, 1792
        return {
            "x": _w((lambda *s: torch.randn(*s, dtype=torch.bfloat16) * 0.05)(B, S, D)),
            "w1": _w((lambda *s: torch.randn(*s, dtype=torch.bfloat16) * 6.4)(D, F) * (D ** -0.5)),
            "w2": _w((lambda *s: torch.randn(*s, dtype=torch.bfloat16) * 0.2)(F, D) * (F ** -0.5)),
        }
    _B_in = _B_setup()

    return {
        "A_u": _A_in["u"],
        "A_A_re": _A_in["A_re"],
        "A_A_im": _A_in["A_im"],
        "A_B_re": _A_in["B_re"],
        "A_B_im": _A_in["B_im"],
        "A_C_re": _A_in["C_re"],
        "A_C_im": _A_in["C_im"],
        "A_log_dt": _A_in["log_dt"],
        "A_Dskip": _A_in["Dskip"],
        "B_x": _B_in["x"],
        "B_w1": _B_in["w1"],
        "B_w2": _B_in["w2"],
        "gate_w": _w((lambda *s: torch.randn(*s, dtype=torch.bfloat16) * 0.05)(512) * 16.0),
    }

def reference(A_u, A_A_re, A_A_im, A_B_re, A_B_im, A_C_re, A_C_im, A_log_dt, A_Dskip, B_x, B_w1, B_w2, gate_w):
    def _A_ref(u, A_re, A_im, B_re, B_im, C_re, C_im, log_dt, Dskip):
        Bsz, L, D = u.shape
        dt = torch.exp(log_dt)[:, None]
        A = A_re + 1j * A_im
        Bc = B_re + 1j * B_im
        Cc = C_re + 1j * C_im
        logdA = dt * A
        dB = dt * Bc
        l = (lambda x, dt: x.to(dt))(torch.arange(L), A_re.dtype)
        P = torch.exp(logdA[:, :, None] * l[None, None, :])
        K = torch.einsum("dn,dnl,dn->dl", Cc, P, dB).real
        L2 = 2 * L
        Kp = _pad(K, ((0, 0), (0, L)))
        up = (lambda x, *d: x.permute(*d))(u, 0, 2, 1)
        up = _pad(up, ((0, 0), (0, 0), (0, L)))
        Kf = (lambda x, axes=(-2,-1): torch.fft.rfft2(x.float(), dim=axes))(Kp[:, None, :], axes=(-2, -1))
        Uf = (lambda x, axes=(-2,-1): torch.fft.rfft2(x.float(), dim=axes))(up[:, :, None, :], axes=(-2, -1))
        Yf = Uf * Kf[None, :, :, :]
        y = (lambda x, s, axes=(-2,-1): torch.fft.irfft2(x, s=s, dim=axes).to(torch.bfloat16))(Yf, (1, L2), axes=(-2, -1))[:, :, 0, :L]
        y = (lambda x, *d: x.permute(*d))(y, 0, 2, 1) + u * Dskip[None, None, :]
        return y

    def _B_ref(x, w1, w2):
        h = torch.einsum("bsd,df->bsf", x, w1)
        h = _silu(h)
        out = torch.einsum("bsf,fd->bsd", h, w2)
        return out

    x = A_u
    g = _sigmoid((x * gate_w).sum(-1, keepdims=True))
    a = _A_ref(x, A_A_re, A_A_im, A_B_re, A_B_im, A_C_re, A_C_im, A_log_dt, A_Dskip)
    b = _B_ref(x, B_w1, B_w2)
    return g * a + (1 - g) * b
```

```python
import re

TRANS = ("v_exp_f32", "v_log_f32", "v_rcp_f32", "v_rsq_f32", "v_sqrt_f32", "v_sin_f32", "v_cos_f32")

def _regs(tok):
    tok = tok.strip()
    neg = tok.lstrip("-")
    if neg.startswith("abs(") or neg.startswith("|"):
        neg = neg.replace("abs(", "").replace(")", "").replace("|", "")
    m = re.fullmatch(r"([vsa])(\d+)", neg)
    if m: return {(m.group(1), int(m.group(2)))}
    m = re.fullmatch(r"([vsa])\[(\d+):(\d+)\]", neg)
    if m: return {(m.group(1), i) for i in range(int(m.group(2)), int(m.group(3)) + 1)}
    if neg == "vcc": return {("s", "vcc")}
    if neg in ("vcc_lo", "vcc_hi"): return {("s", "vcc")}
    if neg == "m0": return {("s", "m0")}
    if neg == "exec": return {("s", "exec")}
    return set()

class Ins:
    __slots__ = ("text", "op", "dst", "src", "kind", "passes", "srcc", "dpp", "lds", "wide", "nstates")
    def __init__(self, text):
        self.text = text
        body = text.split(";")[0].strip()
        parts = body.split(None, 1)
        self.op = op = parts[0]
        rest = parts[1] if len(parts) > 1 else ""
        ops, depth, cur = [], 0, ""
        for ch in rest:
            if ch in "[(": depth += 1
            if ch in "])": depth -= 1
            if ch == "," and depth == 0: ops.append(cur); cur = ""
            else: cur += ch
        if cur.strip(): ops.append(cur)
        toks = []
        mods = ""
        for i, o in enumerate(ops):
            o = o.strip()
            sp = o.split()
            toks.append(sp[0] if sp else "")
            if len(sp) > 1: mods += " " + " ".join(sp[1:])
        self.dst, self.src, self.srcc = set(), set(), set()
        self.passes = 0; self.dpp = ("row_" in mods or "quad_perm" in mods or "wave_" in mods or "dpp" in op)
        self.lds = False; self.wide = False; self.nstates = 1
        R = [_regs(t) for t in toks]
        if op == "s_nop":
            self.kind = "nop"; self.nstates = int(toks[0], 0) + 1
        elif op.startswith("v_mfma"):
            self.kind = "mfma"; self.dst = R[0]; self.src = R[1] | R[2] | R[3]; self.srcc = R[3]
            self.passes = 8 if "32x32" in op else 4
        elif op.startswith("v_cmp"):
            self.kind = "valu"; self.dst = R[0]
            for r in R[1:]: self.src |= r
        elif op.startswith("v_readfirstlane") or op.startswith("v_readlane"):
            self.kind = "valu"; self.dst = R[0]
            for r in R[1:]: self.src |= r
        elif op.startswith("v_"):
            self.kind = "trans" if op.replace("_e32", "").replace("_e64", "") in TRANS else "valu"
            self.dst = R[0]
            start = 1
            if op.startswith(("v_add_co", "v_sub_co", "v_addc_co", "v_subb_co", "v_subrev_co")):
                self.dst |= R[1]; start = 2
            for r in R[start:]: self.src |= r
            if op.startswith(("v_fmac", "v_mac", "v_pk_fmac")): self.src |= R[0]
            if op.startswith("v_cndmask") and len(toks) == 3: self.src |= {("s", "vcc")}
            if op.startswith("v_permlane") or op.startswith("v_swap"):
                self.dst |= R[1]; self.src |= R[0]
            if self.dpp: self.src |= R[0]
        elif op.startswith(("buffer_", "global_")):
            self.kind = "vmem"
            self.lds = bool(re.search(r"\blds\b", mods)) or "_lds_" in op
            is_store = "store" in op
            is_atomic = "atomic" in op
            if self.lds:
                for r in R: self.src |= r
                self.src |= {("s", "m0")}
            elif is_store or is_atomic:
                for r in R: self.src |= r
                if is_atomic and "sc0" in mods: self.dst = R[0] if op.startswith("buffer_") else R[0]
                self.wide = is_store and ("x4" in op or "x3" in op)
            else:
                self.dst = R[0]
                for r in R[1:]: self.src |= r
        elif op.startswith("ds_"):
            self.kind = "ds"
            if "read" in op or "bpermute" in op or "swizzle" in op:
                self.dst = R[0]
                for r in R[1:]: self.src |= r
            else:
                for r in R: self.src |= r
        elif op.startswith("s_"):
            self.kind = "salu"
            if op.startswith(("s_cmp", "s_cbranch", "s_branch", "s_waitcnt", "s_barrier", "s_endpgm", "s_setprio", "s_sleep", "s_bitcmp")):
                for r in R: self.src |= r
            else:
                self.dst = R[0] if R else set()
                for r in R[1:]: self.src |= r
        else:
            raise ValueError("unknown op " + text)

def need(p, c):
    n = 0
    pv = {r for r in p.dst if r[0] in "va"}
    ps = {r for r in p.dst if r[0] == "s"}
    cvalu = c.kind in ("valu", "trans")
    if p.kind in ("valu", "trans"):
        if c.kind == "mfma" and pv & c.src: n = max(n, 2)
        if p.kind == "trans" and c.kind in ("valu", "mfma") and pv & c.src: n = max(n, 1)
        if p.kind == "trans" and c.kind in ("vmem", "ds") and pv & c.src: n = max(n, 1)
        if cvalu and ps & c.src: n = max(n, 2)
        if c.kind == "vmem" and ps & c.src: n = max(n, 5)
        if c.kind == "salu" and ps & c.src: n = max(n, 1)
        if c.op.startswith(("v_readlane", "v_readfirstlane")) and pv & c.src: n = max(n, 1)
        if c.op.startswith(("v_readlane", "v_writelane")) and ps & c.src: n = max(n, 4)
        if cvalu and c.dpp and pv & c.src: n = max(n, 2)
        if c.op.startswith("v_permlane") and pv & c.src: n = max(n, 2)
    if p.kind == "mfma":
        big = p.passes == 8
        if c.kind == "mfma":
            if p.dst & (c.src - c.srcc): n = max(n, 12 if big else 8)
            if p.dst & c.srcc and p.dst != c.srcc: n = max(n, 10 if big else 6)
            if p.dst & c.dst and p.dst != c.dst: n = max(n, 10 if big else 6)
        elif c.kind in ("valu", "trans", "vmem", "ds"):
            if p.dst & (c.src | c.dst): n = max(n, 12 if big else 8)
            if cvalu and p.srcc & c.dst: n = max(n, 7 if big else 3)
    if p.kind == "vmem" and p.wide and cvalu:
        if {r for r in p.src if r[0] in "va"} & c.dst: n = max(n, 2)
    if p.kind == "vmem" and p.wide and c.kind in ("vmem", "ds", "mfma"):
        if {r for r in p.src if r[0] in "va"} & c.dst: n = max(n, 2)
    if p.kind == "ds" and cvalu and ("write_b128" in p.op or "write_b96" in p.op):
        if {r for r in p.src if r[0] in "va"} & c.dst: n = max(n, 2)
    if p.kind == "salu" and ("s", "m0") in p.dst and c.kind == "vmem" and c.lds: n = max(n, 1)
    if p.kind == "salu" and ("s", "exec") in p.dst and c.kind == "mfma": n = max(n, 4)
    return n

class Asm:
    def __init__(self):
        self.lines = []
    def __call__(self, text):
        for ln in text.split("\n"):
            ln = ln.strip()
            if ln: self.lines.append(ln)
    def label(self, name): self.lines.append(name + ":")
    def comment(self, t): self.lines.append("; " + t)
    def finish(self):
        out = []; hist = []
        nn = 0
        for ln in self.lines:
            if ln.startswith(";") or ln.endswith(":") or ln.startswith("."):
                out.append(ln); continue
            ins = Ins(ln)
            req = 0
            dist = 0
            for p in reversed(hist):
                r = need(p, ins)
                if r > dist: req = max(req, r - dist)
                dist += p.nstates
                if dist >= 20: break
            while req > 0:
                k = min(req, 16)
                nop = Ins(f"s_nop {k-1}")
                out.append("    " + nop.text); hist.append(nop); req -= k; nn += 1
            out.append("    " + ln); hist.append(ins)
            if len(hist) > 40: hist = hist[-40:]
        self.n_nops = nn
        return "\n".join(out)
```

```python
from emit import Asm

NAME = "gated_mix__ssm_conv_s4__dense_activation_silu__prompt"
KA = dict(u=0, A_re=8, A_im=16, B_re=24, B_im=32, C_re=40, C_im=48, log_dt=56, Dskip=64, x=72, w1=80, w2=88,
          gate_w=96, out=104, dbg=112, ws=120)
HF_OFF  = 0x0000000; HF_SIZE  = 32 * 56 * 4096
W2F_OFF = 0x0800000; W2F_SIZE = 8 * 56 * 4096
KR_OFF  = 0x0A00000; KR_STRIDE = 4160; KR_SIZE = 512 * KR_STRIDE + 64
UT_OFF  = 0x0D00000; UT_SIZE = 512 * 4096
G_OFF   = 0x0F00000; G_SIZE = 2048 * 8
AT_OFF  = 0x1000000; AT_SIZE = 512 * 4096
SRD3 = 0x00020000
LOG2E = 0x3fb8aa3b
INV2PI = 0x3e22f983

def vr(a, n=1):
    return f"v{a}" if n == 1 else f"v[{a}:{a+n-1}]"
def sr(a, n=1):
    return f"s{a}" if n == 1 else f"s[{a}:{a+n-1}]"

def srd_from(A, dst, base_lo, off, size):
    if off:
        A(f"s_add_u32 s{dst}, s{base_lo}, {off:#x}")
        A(f"s_addc_u32 s{dst+1}, s{base_lo+1}, 0")
    else:
        A(f"s_mov_b32 s{dst}, s{base_lo}")
        A(f"s_mov_b32 s{dst+1}, s{base_lo+1}")
    A(f"s_mov_b32 s{dst+2}, {size:#x}")
    A(f"s_mov_b32 s{dst+3}, {SRD3:#x}")

def kernel_header(name):
    return f""".globl {name}
.p2align 8
.type {name},@function
{name}:
"""

def kernel_desc(name, vgpr, sgpr):
    acc = (vgpr + 3) // 4 * 4
    return f""".section .rodata,"a"
.p2align 6
.amdhsa_kernel {name}
  .amdhsa_next_free_vgpr {vgpr}
  .amdhsa_next_free_sgpr {sgpr}
  .amdhsa_accum_offset {acc}
  .amdhsa_group_segment_fixed_size 0
  .amdhsa_kernarg_size 128
  .amdhsa_user_sgpr_count 2
  .amdhsa_user_sgpr_kernarg_segment_ptr 1
  .amdhsa_system_sgpr_workgroup_id_x 1
.end_amdhsa_kernel
"""
```

```python
from gen_common import *

NSLOT = 5
X_BYTES = 8192
W_BYTES = 7680
SLOT = X_BYTES + W_BYTES
NCH = 16

def gen_gemm1(A):
    A.label("L_gemm1")
    A("s_load_dwordx2 s[4:5], s[0:1], 0")
    A("s_load_dwordx2 s[6:7], s[0:1], 80")
    A("s_load_dwordx2 s[8:9], s[0:1], 120")
    A("v_lshrrev_b32 v2, 6, v0")
    A("v_and_b32 v1, 63, v0")
    A("v_readfirstlane_b32 s20, v2")
    A("s_and_b32 s21, s2, 7")
    A("s_lshr_b32 s22, s2, 3")
    A("s_lshr_b32 s23, s21, 1")
    A("s_lshl_b32 s23, s23, 2")
    A("s_lshr_b32 s24, s22, 3")
    A("s_add_u32 s23, s23, s24")
    A("s_and_b32 s24, s21, 1")
    A("s_lshl_b32 s24, s24, 3")
    A("s_and_b32 s25, s22, 7")
    A("s_add_u32 s24, s24, s25")
    A("v_lshrrev_b32 v3, 2, v1")
    A("v_lshrrev_b32 v4, 2, v3")
    A("v_sub_u32 v4, 4, v4")
    A("v_and_b32 v4, 3, v4")
    A("v_and_b32 v5, 3, v1")
    A("v_xor_b32 v4, v4, v5")
    A("v_lshlrev_b32 v3, 10, v3")
    A("v_lshl_add_u32 v10, v4, 4, v3")
    A("v_mul_u32_u24 v3, 0x4925, v1")
    A("v_lshrrev_b32 v3, 18, v3")
    A("v_mul_u32_u24 v4, 14, v3")
    A("v_sub_u32 v4, v1, v4")
    A("v_mul_u32_u24 v3, 3584, v3")
    A("v_lshl_add_u32 v11, v4, 4, v3")
    A("s_mov_b32 s52, -1")
    A("s_mov_b32 s53, 0x00ffffff")
    A("s_waitcnt lgkmcnt(0)")
    srd_from(A, 12, 4, 0, 2048 * 1024)
    srd_from(A, 16, 6, 0, 512 * 3584)
    srd_from(A, 28, 8, HF_OFF, HF_SIZE)
    A("s_lshl_b32 s32, s23, 17")
    A("s_lshl_b32 s33, s20, 15")
    A("s_add_u32 s32, s32, s33")
    A("s_mul_i32 s34, s24, 224")
    A(f"s_mul_i32 s35, s20, {8*3584}")
    A("s_add_u32 s34, s34, s35")
    A("s_lshl_b32 s36, s20, 11")
    A(f"s_mul_i32 s37, s20, {8*224+128}")
    A(f"s_add_u32 s37, s37, {X_BYTES}")
    def issue(ch):
        slot = (ch % NSLOT) * SLOT
        A(f"s_add_u32 m0, s36, {slot}")
        A(f"s_add_u32 s38, s32, {ch*64}")
        A("buffer_load_dwordx4 v10, s[12:15], s38 offen lds")
        A(f"s_add_u32 m0, s36, {slot+1024}")
        A(f"s_add_u32 s38, s32, {ch*64 + 16384}")
        A("buffer_load_dwordx4 v10, s[12:15], s38 offen lds")
        A("s_mov_b64 exec, s[52:53]")
        A(f"s_add_u32 m0, s37, {slot}")
        A(f"s_add_u32 s38, s34, {ch*32*3584}")
        A("buffer_load_dwordx4 v11, s[16:19], s38 offen lds")
        A(f"s_add_u32 m0, s37, {slot+4*224}")
        A(f"s_add_u32 s38, s34, {ch*32*3584 + 4*3584}")
        A("buffer_load_dwordx4 v11, s[16:19], s38 offen lds")
        A("s_mov_b64 exec, -1")
    for ch in range(NSLOT - 1): issue(ch)
    A("v_and_b32 v3, 15, v1")
    A("v_lshrrev_b32 v4, 2, v3")
    A("v_sub_u32 v4, 4, v4")
    A("v_and_b32 v4, 3, v4")
    A("v_lshrrev_b32 v5, 4, v1")
    A("v_xor_b32 v4, v4, v5")
    A("v_lshlrev_b32 v3, 6, v3")
    A("v_lshl_add_u32 v12, v4, 4, v3")
    A("v_add_u32 v12, s36, v12")
    A("v_mul_u32_u24 v3, 1920, v5")
    A("v_bfe_u32 v4, v1, 2, 2")
    A("v_mul_u32_u24 v4, 224, v4")
    A("v_add_u32 v3, v3, v4")
    A("v_and_b32 v4, 3, v1")
    A("v_lshl_add_u32 v13, v4, 3, v3")
    A(f"v_add_u32 v13, {X_BYTES}, v13")
    ACC = 16
    FR = [72, 108]
    for i in range(56): A(f"v_mov_b32 v{ACC+i}, 0")
    def reads(ch):
        slot = (ch % NSLOT) * SLOT; f = FR[ch % 2]
        lst = []
        lst.append(f"ds_read_b128 v[{f}:{f+3}], v12 offset:{slot}")
        lst.append(f"ds_read_b128 v[{f+4}:{f+7}], v12 offset:{slot+1024}")
        for ph in range(7):
            lst.append(f"ds_read_b64_tr_b16 v[{f+8+4*ph}:{f+9+4*ph}], v13 offset:{slot+32*ph}")
            lst.append(f"ds_read_b64_tr_b16 v[{f+10+4*ph}:{f+11+4*ph}], v13 offset:{slot+32*ph+896}")
        return lst
    def mfmas(ch):
        f = FR[ch % 2]; lst = []
        for ph in range(7):
            for tt in range(2):
                a = ACC + (tt * 7 + ph) * 4
                lst.append(f"v_mfma_f32_16x16x32_bf16 v[{a}:{a+3}], v[{f+8+4*ph}:{f+11+4*ph}], v[{f+4*tt}:{f+4*tt+3}], v[{a}:{a+3}]")
        return lst
    for ch in range(NCH + 1):
        if ch < NCH:
            out_after = min(NCH - 1, ch + NSLOT - 2) - ch
            A(f"s_waitcnt vmcnt({4*out_after})")
            A("s_barrier")
            if ch + NSLOT - 1 < NCH: issue(ch + NSLOT - 1)
            rd = reads(ch)
        else:
            rd = []
        mf = mfmas(ch - 1) if ch > 0 else []
        while rd or mf:
            if rd: A(rd.pop(0))
            if mf: A(mf.pop(0))
        A("s_waitcnt lgkmcnt(0)")
    A("v_lshlrev_b32 v14, 4, v1")
    A("s_lshl_b32 s40, s23, 3")
    A("s_lshl_b32 s41, s20, 1")
    A("s_add_u32 s40, s40, s41")
    A("s_lshr_b32 s41, s40, 2")
    A("s_and_b32 s42, s40, 3")
    A(f"s_mul_i32 s41, s41, {56*4096}")
    A("s_lshl_b32 s42, s42, 10")
    A("s_add_u32 s41, s41, s42")
    A("s_mul_i32 s43, s24, 7")
    A("s_lshr_b32 s44, s43, 1")
    A("s_lshl_b32 s44, s44, 12")
    A("s_add_u32 s41, s41, s44")
    P = 72
    NL2E = LOG2E ^ 0x80000000
    A(f"s_mov_b32 s46, {NL2E:#x}")
    A("s_mov_b32 s47, s46")
    A("s_mov_b32 s48, 1.0")
    A("s_mov_b32 s49, 1.0")
    def silu_pack(a, dst):
        t = 140
        for h in range(2):
            A(f"v_cvt_pk_bf16_f32 v{t+h}, v{a+2*h}, v{a+2*h+1}")
        for h in range(2):
            A(f"v_and_b32 v{a+2*h+1}, 0xffff0000, v{t+h}")
            A(f"v_lshlrev_b32 v{a+2*h}, 16, v{t+h}")
        for h in range(2):
            A(f"v_pk_mul_f32 v[{t+2+2*h}:{t+3+2*h}], v[{a+2*h}:{a+2*h+1}], s[46:47]")
        for k in range(4): A(f"v_exp_f32 v{t+2+k}, v{t+2+k}")
        for h in range(2):
            A(f"v_pk_add_f32 v[{t+2+2*h}:{t+3+2*h}], v[{t+2+2*h}:{t+3+2*h}], s[48:49]")
        for k in range(4): A(f"v_rcp_f32 v{t+2+k}, v{t+2+k}")
        for h in range(2):
            A(f"v_pk_mul_f32 v[{a+2*h}:{a+2*h+1}], v[{a+2*h}:{a+2*h+1}], v[{t+2+2*h}:{t+3+2*h}]")
        for h in range(2):
            A(f"v_cvt_pk_bf16_f32 v{dst+h}, v{a+2*h}, v{a+2*h+1}")
    A("s_and_b32 s45, s24, 1")
    A("s_cmp_eq_u32 s45, 1")
    A("s_cbranch_scc1 L_g1_odd")
    for par in range(2):
        if par == 1: A.label("L_g1_odd")
        n = 0
        for tt in range(2):
            if par == 0:
                groups = [((0, 1), 0), ((2, 3), 1), ((4, 5), 2), ((6,), 3)]
            else:
                groups = [((0,), 0), ((1, 2), 1), ((3, 4), 2), ((5, 6), 3)]
            for (phs, kk) in groups:
                d = P + (n % 8) * 4; n += 1
                for i, ph in enumerate(phs):
                    silu_pack(ACC + (tt * 7 + ph) * 4, d + 2 * i)
                A(f"s_add_u32 s50, s41, {kk*4096 + tt*1024}")
                if len(phs) == 2:
                    A(f"buffer_store_dwordx4 v[{d}:{d+3}], v14, s[28:31], s50 offen")
                elif par == 0:
                    A(f"buffer_store_dwordx2 v[{d}:{d+1}], v14, s[28:31], s50 offen")
                else:
                    A(f"buffer_store_dwordx2 v[{d}:{d+1}], v14, s[28:31], s50 offen offset:8")
        A("s_endpgm")
```

```python
from gen_common import *

CH_STRIDE = 37888; CP = 4160; U_OFF = 33280
RED = 0; AT_L = 65536; AT_S = 144

def gen_gemm2(A):
    A.label("L_gemm2")
    A("s_load_dwordx4 s[4:7], s[0:1], 104")
    A("s_load_dwordx2 s[8:9], s[0:1], 120")
    A("v_lshrrev_b32 v2, 6, v0")
    A("v_and_b32 v1, 63, v0")
    A("v_readfirstlane_b32 s20, v2")
    A("s_and_b32 s21, s2, 7")
    A("s_lshr_b32 s22, s2, 3")
    A("s_lshl_b32 s23, s21, 2")
    A("s_lshr_b32 s24, s22, 3")
    A("s_add_u32 s23, s23, s24")
    A("s_and_b32 s24, s22, 7")
    A("v_lshlrev_b32 v3, 4, v1")
    A(f"s_mul_i32 s25, s20, {14*4096}")
    A("v_add_u32 v4, s25, v3")
    A(f"s_mul_i32 s26, s23, {56*4096}")
    A(f"s_mul_i32 s27, s24, {56*4096}")
    A("s_waitcnt lgkmcnt(0)")
    A("s_add_u32 s12, s8, s26")
    A("s_addc_u32 s13, s9, 0")
    A(f"s_mov_b32 s14, {56*4096}")
    A(f"s_mov_b32 s15, {SRD3:#x}")
    A(f"s_add_u32 s16, s8, {W2F_OFF:#x}")
    A("s_addc_u32 s17, s9, 0")
    A("s_add_u32 s16, s16, s27")
    A("s_addc_u32 s17, s17, 0")
    A(f"s_mov_b32 s18, {56*4096}")
    A(f"s_mov_b32 s19, {SRD3:#x}")
    SET = [64, 96, 128, 160]; ACC = 192
    def issue(i):
        s = SET[i % 4]
        A(f"s_mov_b32 s40, {i*4096}")
        for k in range(4):
            A(f"buffer_load_dwordx4 v[{s+4*k}:{s+4*k+3}], v4, s[12:15], s40 offen offset:{k*1024}")
            A(f"buffer_load_dwordx4 v[{s+16+4*k}:{s+16+4*k+3}], v4, s[16:19], s40 offen offset:{k*1024}")
    for i in range(3): issue(i)
    srd_from(A, 28, 8, AT_OFF, AT_SIZE)
    srd_from(A, 32, 8, G_OFF, G_SIZE)
    srd_from(A, 36, 4, 0, 2048 * 1024)
    srd_from(A, 44, 6, 0, 256)
    for i in range(64): A(f"v_mov_b32 v{ACC+i}, 0")
    for i in range(14):
        if i + 3 < 14: issue(i + 3)
        left = min(13, i + 3) - i
        A(f"s_waitcnt vmcnt({8*left})")
        s = SET[i % 4]
        for dt in range(4):
            for tt in range(4):
                a = ACC + (dt * 4 + tt) * 4
                A(f"v_mfma_f32_16x16x32_bf16 v[{a}:{a+3}], v[{s+16+4*dt}:{s+16+4*dt+3}], v[{s+4*tt}:{s+4*tt+3}], v[{a}:{a+3}]")
    A("v_and_b32 v5, 15, v1")
    A("s_lshl_b32 s41, s23, 6")
    A("s_lshl_b32 s42, s20, 4")
    A("s_add_u32 s41, s41, s42")
    A("v_add_u32 v6, s41, v5")
    A("v_lshlrev_b32 v7, 3, v6")
    A("buffer_load_dwordx2 v[8:9], v7, s[32:35], 0 offen")
    A("s_lshl_b32 s42, s20, 12")
    A("v_add_u32 v10, s42, v3")
    for tt in range(4):
        for dt in range(4):
            a = ACC + (dt * 4 + tt) * 4
            A(f"ds_write_b128 v10, v[{a}:{a+3}] offset:{RED + tt*16384 + dt*1024}")
    A("s_lshl_b32 s43, s24, 5")
    A("v_mov_b32 v11, s43")
    A("s_mov_b32 s48, 0")
    A.label("L_g2_poll")
    A("buffer_load_dword v12, v11, s[44:47], 0 offen sc1")
    A("s_waitcnt vmcnt(0)")
    A("v_readfirstlane_b32 s49, v12")
    A("s_add_u32 s48, s48, 1")
    A("s_cmp_ge_u32 s49, 32")
    A("s_cbranch_scc1 L_g2_go")
    A("s_cmp_lt_u32 s48, 0x40000")
    A("s_sleep 2")
    A("s_cbranch_scc1 L_g2_poll")
    A.label("L_g2_go")
    A("v_lshrrev_b32 v13, 3, v1")
    A("v_and_b32 v14, 7, v1")
    A("v_lshlrev_b32 v15, 12, v13")
    A("v_lshl_add_u32 v15, v14, 4, v15")
    A("s_lshl_b32 s50, s24, 18")
    A("s_lshl_b32 s51, s20, 16")
    A("s_add_u32 s50, s50, s51")
    A("s_lshl_b32 s51, s23, 7")
    A("s_add_u32 s50, s50, s51")
    A("buffer_load_dwordx4 v[16:19], v15, s[28:31], s50 offen sc1")
    A("s_add_u32 s50, s50, 0x8000")
    A("buffer_load_dwordx4 v[20:23], v15, s[28:31], s50 offen sc1")
    A(f"v_mul_u32_u24 v13, {AT_S}, v13")
    A("v_lshl_add_u32 v13, v14, 4, v13")
    A(f"s_mul_i32 s51, s20, {16*AT_S}")
    A(f"s_add_u32 s51, s51, {AT_L}")
    A("v_add_u32 v13, s51, v13")
    A("s_waitcnt vmcnt(0)")
    A("ds_write_b128 v13, v[16:19]")
    A(f"ds_write_b128 v13, v[20:23] offset:{8*AT_S}")
    A("s_waitcnt lgkmcnt(0)")
    A("s_barrier")
    A("s_lshl_b32 s42, s20, 14")
    A("v_add_u32 v10, s42, v3")
    S0 = 64
    for src in range(4):
        for dt in range(4):
            r = S0 + (src * 4 + dt) * 4
            A(f"ds_read_b128 v[{r}:{r+3}], v10 offset:{RED + src*4096 + dt*1024}")
    A("v_lshrrev_b32 v13, 4, v1")
    A("v_lshlrev_b32 v13, 3, v13")
    A("v_bfe_u32 v14, v1, 2, 2")
    A("v_add_u32 v13, v13, v14")
    A(f"v_mul_u32_u24 v13, {AT_S}, v13")
    A("v_and_b32 v14, 3, v1")
    A("v_lshl_add_u32 v13, v14, 3, v13")
    A("s_lshl_b32 s51, s20, 5")
    A(f"s_add_u32 s51, s51, {AT_L}")
    A("v_add_u32 v13, s51, v13")
    for dt in range(4):
        A(f"ds_read_b64_tr_b16 v[{24+2*dt}:{25+2*dt}], v13 offset:{(32*(dt>>1) + 4*(dt&1))*AT_S}")
    A("s_waitcnt lgkmcnt(0)")
    B = 128
    for dt in range(4):
        for r in range(4):
            x = [S0 + (src * 4 + dt) * 4 + r for src in range(4)]
            A(f"v_add_f32 v{x[0]}, v{x[0]}, v{x[1]}")
            A(f"v_add_f32 v{x[2]}, v{x[2]}, v{x[3]}")
            A(f"v_add_f32 v{B+dt*4+r}, v{x[0]}, v{x[2]}")
    O = 160
    for dt in range(4):
        for h in range(2):
            b0, b1 = B + dt * 4 + 2 * h, B + dt * 4 + 2 * h + 1
            ar = 24 + 2 * dt + h
            A(f"v_cvt_pk_bf16_f32 v32, v{b0}, v{b1}")
            A("v_lshlrev_b32 v33, 16, v32")
            A("v_and_b32 v34, 0xffff0000, v32")
            A("v_mul_f32 v33, v9, v33")
            A("v_mul_f32 v34, v9, v34")
            A("v_cvt_pk_bf16_f32 v32, v33, v34")
            A(f"v_lshlrev_b32 v35, 16, v{ar}")
            A(f"v_and_b32 v36, 0xffff0000, v{ar}")
            A("v_mul_f32 v35, v8, v35")
            A("v_mul_f32 v36, v8, v36")
            A("v_cvt_pk_bf16_f32 v37, v35, v36")
            A("v_lshlrev_b32 v33, 16, v32")
            A("v_and_b32 v34, 0xffff0000, v32")
            A("v_lshlrev_b32 v35, 16, v37")
            A("v_and_b32 v36, 0xffff0000, v37")
            A("v_add_f32 v33, v33, v35")
            A("v_add_f32 v34, v34, v36")
            A(f"v_cvt_pk_bf16_f32 v{O+dt*2+h}, v33, v34")
    A("v_lshlrev_b32 v6, 10, v6")
    A("v_lshrrev_b32 v13, 4, v1")
    A("v_lshl_add_u32 v6, v13, 4, v6")
    A("s_lshl_b32 s51, s24, 7")
    A(f"buffer_store_dwordx4 v[{O}:{O+3}], v6, s[36:39], s51 offen")
    A(f"buffer_store_dwordx4 v[{O+4}:{O+7}], v6, s[36:39], s51 offen offset:64")
    A("s_endpgm")

def gen_conv(A):
    A.label("L_conv")
    A("s_load_dwordx2 s[4:5], s[0:1], 64")
    A("s_load_dwordx4 s[8:11], s[0:1], 112")
    A("s_sub_u32 s20, s2, 256")
    A("v_lshrrev_b32 v2, 6, v0")
    A("v_and_b32 v1, 63, v0")
    A("v_readfirstlane_b32 s21, v2")
    A("s_lshr_b32 s22, s21, 1")
    A("s_and_b32 s23, s21, 1")
    A("s_lshl_b32 s24, s20, 1")
    A("s_add_u32 s24, s24, s22")
    A(f"s_mul_i32 s25, s22, {CH_STRIDE}")
    A("v_lshlrev_b32 v3, 4, v1")
    A("s_waitcnt lgkmcnt(0)")
    A("s_lshl_b32 s26, s20, 2")
    A("s_load_dword s27, s[4:5], s26")
    srd_from(A, 12, 10, KR_OFF, KR_SIZE)
    srd_from(A, 16, 10, UT_OFF, UT_SIZE)
    srd_from(A, 28, 10, AT_OFF, AT_SIZE)
    srd_from(A, 32, 8, 0, 256)
    A(f"s_mul_i32 s36, s24, {KR_STRIDE}")
    A("s_lshl_b32 s37, s23, 3")
    A("s_add_u32 s36, s36, s37")
    A(f"s_mul_i32 s38, s23, {4*CP}")
    A("s_add_u32 s38, s38, s25")
    for cc in range(4):
        A(f"s_add_u32 m0, s38, {cc*CP}")
        A(f"s_add_u32 s39, s36, {2*cc}")
        for i in range(4):
            A(f"buffer_load_dwordx4 v3, s[12:15], s39 offen offset:{i*1024} lds")
    A("s_lshl_b32 s40, s24, 12")
    A("s_lshl_b32 s41, s23, 11")
    A("s_add_u32 s40, s40, s41")
    A("s_add_u32 s42, s25, s41")
    A(f"s_add_u32 m0, s42, {U_OFF + 480}")
    A("buffer_load_dwordx4 v3, s[16:19], s40 offen lds")
    A("buffer_load_dwordx4 v3, s[16:19], s40 offen offset:1024 lds")
    for i in range(4): A(f"v_mov_b32 v{4+i}, 0")
    A("s_cmp_eq_u32 s23, 0")
    A("s_cbranch_scc0 L_conv_z1")
    A(f"s_add_u32 s43, s25, {U_OFF}")
    A("v_add_u32 v8, s43, v3")
    A("v_cmp_gt_u32 vcc, 30, v1")
    A("s_and_saveexec_b64 s[44:45], vcc")
    A("ds_write_b128 v8, v[4:7]")
    A("s_mov_b64 exec, s[44:45]")
    A("s_branch L_conv_z2")
    A.label("L_conv_z1")
    A(f"v_mul_u32_u24 v8, {CP}, v1")
    A("s_add_u32 s43, s25, 4096")
    A("v_add_u32 v8, s43, v8")
    A("v_cmp_gt_u32 vcc, 8, v1")
    A("s_and_saveexec_b64 s[44:45], vcc")
    A("ds_write_b128 v8, v[4:7]")
    A("s_mov_b64 exec, s[44:45]")
    A.label("L_conv_z2")
    A("v_and_b32 v9, 15, v1")
    A("v_lshrrev_b32 v10, 4, v1")
    A("v_lshlrev_b32 v11, 5, v9")
    A("v_lshl_add_u32 v11, v10, 4, v11")
    A(f"s_add_u32 s43, s25, {U_OFF}")
    A("v_add_u32 v11, s43, v11")
    A("v_and_b32 v12, 7, v9")
    A("v_sub_u32 v12, 7, v12")
    A(f"v_mul_u32_u24 v12, {CP}, v12")
    A("v_lshrrev_b32 v13, 3, v9")
    A("v_lshlrev_b32 v13, 4, v13")
    A("v_sub_u32 v13, 16, v13")
    A("v_add_u32 v12, v12, v13")
    A("v_lshl_add_u32 v12, v10, 4, v12")
    A("v_add_u32 v12, s25, v12")
    A("v_lshlrev_b32 v13, 5, v9")
    A("v_lshl_add_u32 v13, v10, 3, v13")
    A(f"s_add_u32 s43, s25, {U_OFF + 480}")
    A("v_add_u32 v14, s43, v13")
    A("s_lshl_b32 s46, s24, 12")
    A("s_lshl_b32 s47, s22, 4")
    A("s_waitcnt lgkmcnt(0)")
    A("s_lshr_b32 s27, s27, s47")
    A("s_lshl_b32 s27, s27, 16")
    A("s_waitcnt vmcnt(0)")
    A("s_barrier")
    A("s_cmp_eq_u32 s23, 1")
    A("s_cbranch_scc1 L_conv_p1")
    ACC = 16
    SETS = [40, 64, 88]
    for par, R in ((0, [7, 6, 2]), (1, [5, 4, 3, 1, 0])):
        if par == 1: A.label("L_conv_p1")
        for i in range(len(R) * 4): A(f"v_mov_b32 v{ACC+i}, 0")
        M = 8 * (R[0] + 1)
        def act(m): return [k for k, r in enumerate(R) if m < 8 * (r + 1)]
        def reads(m):
            s = SETS[m % 3]
            A(f"ds_read_b128 v[{s}:{s+3}], v11 offset:{64*m}")
            for k in act(m):
                A(f"ds_read_b128 v[{s+4+4*k}:{s+7+4*k}], v12 offset:{512*(7-R[k]) + 64*m}")
            return 1 + len(act(m))
        cnt = {}
        cnt[0] = reads(0); cnt[1] = reads(1)
        for m in range(M):
            if m + 2 < M: cnt[m + 2] = reads(m + 2)
            left = sum(cnt[x] for x in (m + 1, m + 2) if x < M)
            A(f"s_waitcnt lgkmcnt({left})")
            s = SETS[m % 3]
            for k in act(m):
                a = ACC + 4 * k
                A(f"v_mfma_f32_16x16x32_bf16 v[{a}:{a+3}], v[{s+4+4*k}:{s+7+4*k}], v[{s}:{s+3}], v[{a}:{a+3}]")
        for k, r in enumerate(R):
            A(f"ds_read_b64 v[{40+2*k}:{41+2*k}], v14 offset:{512*r}")
        A("s_waitcnt lgkmcnt(0)")
        for k, r in enumerate(R):
            a = ACC + 4 * k
            for h in range(2):
                A(f"v_cvt_pk_bf16_f32 v60, v{a+2*h}, v{a+2*h+1}")
                A(f"v_lshlrev_b32 v61, 16, v{40+2*k+h}")
                A(f"v_and_b32 v62, 0xffff0000, v{40+2*k+h}")
                A("v_mul_f32 v61, s27, v61")
                A("v_mul_f32 v62, s27, v62")
                A("v_cvt_pk_bf16_f32 v61, v61, v62")
                A("v_lshlrev_b32 v62, 16, v60")
                A("v_and_b32 v60, 0xffff0000, v60")
                A("v_lshlrev_b32 v63, 16, v61")
                A("v_and_b32 v61, 0xffff0000, v61")
                A("v_add_f32 v62, v62, v63")
                A("v_add_f32 v60, v60, v61")
                A(f"v_cvt_pk_bf16_f32 v{64+2*k+h}, v62, v60")
            A(f"s_add_u32 s48, s46, {512*r}")
            A(f"buffer_store_dwordx2 v[{64+2*k}:{65+2*k}], v13, s[28:31], s48 offen sc1")
        A("s_branch L_conv_fin") if par == 0 else None
    A.label("L_conv_fin")
    A("s_waitcnt vmcnt(0)")
    A("s_barrier")
    A("s_cmp_eq_u32 s21, 0")
    A("s_cbranch_scc0 L_conv_end")
    A("s_lshr_b32 s49, s20, 5")
    A("s_lshl_b32 s49, s49, 5")
    A("v_mov_b32 v4, s49")
    A("v_mov_b32 v5, 1")
    A("v_cmp_eq_u32 vcc, 0, v1")
    A("s_and_saveexec_b64 s[44:45], vcc")
    A("buffer_atomic_add v5, v4, s[32:35], 0 offen sc1")
    A.label("L_conv_end")
    A("s_endpgm")

def k2():
    A = Asm()
    A("s_cmp_ge_u32 s2, 512")
    A("s_cbranch_scc1 L_k2_exit")
    A("s_cmp_ge_u32 s2, 256")
    A("s_cbranch_scc1 L_conv")
    gen_gemm2(A)
    gen_conv(A)
    A.label("L_k2_exit")
    A("s_endpgm")
    return A.finish()
```

```python
from gen_common import *

L_UT = 0; L_W2 = 8192; L_PAR = 16384; L_PART = 20480; L_T16 = 28672; T16_STRIDE = 2112; L_K0 = 33024

def gen_prep(A):
    A.label("L_prep")
    A("s_load_dwordx16 s[4:19], s[0:1], 0")
    A("s_load_dwordx16 s[20:35], s[0:1], 64")
    A("s_sub_u32 s36, s2, 256")
    A("v_lshrrev_b32 v2, 6, v0")
    A("v_and_b32 v1, 63, v0")
    A("v_readfirstlane_b32 s37, v2")
    A("s_lshr_b32 s38, s37, 1")
    A("s_and_b32 s39, s37, 1")
    A("s_waitcnt lgkmcnt(0)")
    A("s_lshl_b32 s40, s36, 2")
    A("s_load_dword s41, s[18:19], s40")
    A("s_lshl_b32 s42, s36, 1")
    A("s_add_u32 s42, s42, s38")
    A("s_lshl_b32 s43, s42, 8")
    A("s_lshl_b32 s60, s39, 7")
    A("s_add_u32 s43, s43, s60")
    A("v_lshl_add_u32 v3, v1, 1, s43")
    for i, b in enumerate((6, 8, 10, 12, 14, 16)):
        A(f"global_load_ushort v{10+i}, v3, s[{b}:{b+1}]")
    srd_from(A, 44, 34, KR_OFF, KR_SIZE)
    srd_from(A, 48, 34, UT_OFF, UT_SIZE)
    srd_from(A, 52, 34, W2F_OFF, W2F_SIZE)
    srd_from(A, 56, 34, G_OFF, G_SIZE)
    srd_from(A, 64, 4, 0, 2048 * 1024)
    srd_from(A, 68, 26, 0, 1792 * 1024)
    A("s_lshr_b32 s60, s36, 3")
    A("s_and_b32 s61, s36, 7")
    A("s_lshl_b32 s62, s60, 16")
    A("s_lshl_b32 s63, s61, 7")
    A("s_add_u32 s62, s62, s63")
    A("s_lshl_b32 s63, s37, 14")
    A("s_add_u32 s62, s62, s63")
    A("v_lshrrev_b32 v4, 3, v1")
    A("v_lshlrev_b32 v4, 10, v4")
    A("v_and_b32 v5, 7, v1")
    A("v_lshl_add_u32 v4, v5, 4, v4")
    A("s_lshl_b32 s63, s37, 11")
    A(f"s_add_u32 m0, s63, {L_UT}")
    A("buffer_load_dwordx4 v4, s[64:67], s62 offen lds")
    A("s_add_u32 s62, s62, 8192")
    A(f"s_add_u32 m0, s63, {L_UT + 1024}")
    A("buffer_load_dwordx4 v4, s[64:67], s62 offen lds")
    A("s_lshl_b32 s72, s36, 2")
    A("s_add_u32 s72, s72, s37")
    A("s_cmp_ge_u32 s72, 896")
    A("s_cbranch_scc1 L_prep_now2a")
    A("s_lshr_b32 s73, s72, 4")
    A("s_lshr_b32 s74, s72, 1")
    A("s_and_b32 s74, s74, 7")
    A("s_and_b32 s75, s72, 1")
    A("s_lshl_b32 s76, s73, 15")
    A("s_lshl_b32 s77, s74, 7")
    A("s_add_u32 s76, s76, s77")
    A("s_lshl_b32 s77, s75, 6")
    A("s_add_u32 s76, s76, s77")
    A("v_lshrrev_b32 v5, 2, v1")
    A("v_lshlrev_b32 v5, 10, v5")
    A("v_and_b32 v6, 3, v1")
    A("v_lshl_add_u32 v5, v6, 4, v5")
    A("s_lshl_b32 s63, s37, 11")
    A(f"s_add_u32 m0, s63, {L_W2}")
    A("buffer_load_dwordx4 v5, s[68:71], s76 offen lds")
    A("s_add_u32 s76, s76, 16384")
    A(f"s_add_u32 m0, s63, {L_W2 + 1024}")
    A("buffer_load_dwordx4 v5, s[68:71], s76 offen lds")
    A.label("L_prep_now2a")
    A("s_lshl_b32 s78, s36, 3")
    A("s_lshl_b32 s79, s37, 1")
    A("s_add_u32 s78, s78, s79")
    A("s_lshl_b32 s79, s78, 10")
    A("v_lshlrev_b32 v6, 4, v1")
    A("buffer_load_dwordx4 v[20:23], v6, s[64:67], s79 offen")
    A("buffer_load_dwordx4 v[24:27], v6, s[64:67], s79 offen offset:1024")
    A("global_load_dwordx4 v[28:31], v6, s[28:29]")
    A(f"s_mul_i32 s80, s38, {T16_STRIDE}")
    A(f"s_add_u32 s80, s80, {L_T16 + 16}")
    A(f"s_sub_u32 s81, s80, {2 * 34176}")
    A("s_sub_u32 s82, s80, 2")
    A("s_lshl_b32 s83, s39, 10")
    A("v_lshl_add_u32 v7, v1, 3, s83")
    A("v_mov_b32 v50, s81")
    A("v_mov_b32 v51, s82")
    A("s_movk_i32 s84, 128")
    for n2 in range(2):
        for e in range(0, 8, 2):
            r0 = 32 + n2 * 8 + e
            A(f"v_add_u32 v52, {512 * n2 + e}, v7")
            A(f"v_add_u32 v53, {512 * n2 + e + 1}, v7")
            A("v_cvt_f32_u32 v54, v52")
            A("v_cvt_f32_u32 v55, v53")
            A("v_cvt_pk_bf16_f32 v54, v54, v55")
            A("v_and_b32 v55, 0xffff, v54")
            A("v_lshrrev_b32 v54, 16, v54")
            for (u, l, dst) in ((55, 52, r0), (54, 53, r0 + 1)):
                A(f"v_add_u32 v{u}, -1, v{u}")
                A(f"v_and_b32 v56, 0xff80, v{u}")
                A(f"v_add_u32 v{u}, v{u}, v56")
                A(f"v_lshl_add_u32 v{u}, v{u}, 1, v50")
                A(f"v_lshl_add_u32 v56, v{l}, 1, v51")
                A(f"v_cmp_lt_u32 vcc, s84, v{l}")
                A(f"v_cndmask_b32 v{dst}, v56, v{u}, vcc")
    A("s_waitcnt lgkmcnt(0)")
    A("s_lshl_b32 s60, s38, 4")
    A("s_lshr_b32 s41, s41, s60")
    A("s_lshl_b32 s41, s41, 16")
    A("v_mov_b32 v8, s41")
    A(f"v_mul_f32 v8, {LOG2E:#x}, v8")
    A("v_exp_f32 v8, v8")
    A("v_cvt_pk_bf16_f32 v8, v8, v8")
    A("v_lshlrev_b32 v8, 16, v8")
    A("s_waitcnt vmcnt(0)")
    for i in range(6):
        A(f"v_lshlrev_b32 v{10+i}, 16, v{10+i}")
    A("v_mul_f32 v10, v8, v10")
    A("v_mul_f32 v11, v8, v11")
    A("v_mul_f32 v12, v8, v12")
    A("v_mul_f32 v13, v8, v13")
    A(f"v_mul_f32 v16, {LOG2E:#x}, v10")
    A(f"v_mul_f32 v17, {INV2PI:#x}, v11")
    A("v_mul_f32 v18, v14, v12")
    A("v_fma_f32 v18, -v15, v13, v18")
    A("v_mul_f32 v19, v14, v13")
    A("v_fma_f32 v19, v15, v12, v19")
    A("s_lshl_b32 s60, s37, 10")
    A(f"s_add_u32 s60, s60, {L_PAR}")
    A("v_lshl_add_u32 v9, v1, 4, s60")
    A("ds_write_b128 v9, v[16:19]")
    A("v_mov_b32 v10, v18")
    for sh in (1, 2, 4, 8):
        A(f"v_add_f32 v10, v10, v10 row_shr:{sh} row_mask:0xf bank_mask:0xf bound_ctrl:0")
    A("v_add_f32 v10, v10, v10 row_bcast:15 row_mask:0xa bank_mask:0xf")
    A("v_add_f32 v10, v10, v10 row_bcast:31 row_mask:0xc bank_mask:0xf")
    A("s_lshl_b32 s61, s37, 2")
    A(f"s_add_u32 s61, s61, {L_K0}")
    A("v_mov_b32 v11, s61")
    A("v_cmp_eq_u32 vcc, 63, v1")
    A("s_and_saveexec_b64 s[86:87], vcc")
    A("ds_write_b32 v11, v10")
    A("s_mov_b64 exec, s[86:87]")
    for row, base in ((0, 20), (1, 24)):
        acc = 10 + row
        for k in range(4):
            x, g = base + k, 28 + k
            A(f"v_lshlrev_b32 v12, 16, v{x}")
            A(f"v_and_b32 v13, 0xffff0000, v{x}")
            A(f"v_lshlrev_b32 v14, 16, v{g}")
            A(f"v_and_b32 v15, 0xffff0000, v{g}")
            A("v_mul_f32 v12, v12, v14")
            A("v_mul_f32 v13, v13, v15")
            A("v_cvt_pk_bf16_f32 v12, v12, v13")
            A("v_and_b32 v13, 0xffff0000, v12")
            A("v_lshlrev_b32 v12, 16, v12")
            if k == 0: A(f"v_add_f32 v{acc}, v12, v13")
            else:
                A(f"v_add_f32 v{acc}, v{acc}, v12")
                A(f"v_add_f32 v{acc}, v{acc}, v13")
    for acc in (10, 11):
        for sh in (1, 2, 4, 8):
            A(f"v_add_f32 v{acc}, v{acc}, v{acc} row_shr:{sh} row_mask:0xf bank_mask:0xf bound_ctrl:0")
        A(f"v_add_f32 v{acc}, v{acc}, v{acc} row_bcast:15 row_mask:0xa bank_mask:0xf")
        A(f"v_add_f32 v{acc}, v{acc}, v{acc} row_bcast:31 row_mask:0xc bank_mask:0xf")
    for acc in (10, 11):
        A(f"v_cvt_pk_bf16_f32 v{acc}, v{acc}, v{acc}")
        A(f"v_lshlrev_b32 v{acc}, 16, v{acc}")
        A(f"v_mul_f32 v{acc}, {LOG2E ^ 0x80000000:#x}, v{acc}")
        A(f"v_exp_f32 v{acc}, v{acc}")
        A(f"v_add_f32 v{acc}, 1.0, v{acc}")
        A(f"v_rcp_f32 v{acc}, v{acc}")
        A(f"v_cvt_pk_bf16_f32 v{acc}, v{acc}, v{acc}")
        A(f"v_lshlrev_b32 v{acc}, 16, v{acc}")
    A("v_mov_b32 v12, v10")
    A("v_sub_f32 v13, 1.0, v10")
    A("v_cvt_pk_bf16_f32 v13, v13, v13")
    A("v_lshlrev_b32 v13, 16, v13")
    A("v_mov_b32 v14, v11")
    A("v_sub_f32 v15, 1.0, v11")
    A("v_cvt_pk_bf16_f32 v15, v15, v15")
    A("v_lshlrev_b32 v15, 16, v15")
    A("s_lshl_b32 s79, s78, 3")
    A("v_mov_b32 v9, 0")
    A("v_cmp_eq_u32 vcc, 63, v1")
    A("s_and_saveexec_b64 s[86:87], vcc")
    A("buffer_store_dwordx4 v[12:15], v9, s[56:59], s79 offen")
    A("s_mov_b64 exec, s[86:87]")
    A("s_cmp_ge_u32 s72, 896")
    A("s_cbranch_scc1 L_prep_now2b")
    A("v_lshrrev_b32 v12, 2, v1")
    A("v_lshlrev_b32 v12, 6, v12")
    A("v_and_b32 v13, 3, v1")
    A("v_lshl_add_u32 v12, v13, 4, v12")
    A("s_lshl_b32 s63, s37, 11")
    A(f"s_add_u32 s63, s63, {L_W2}")
    A("v_add_u32 v12, s63, v12")
    A("ds_read_b64_tr_b16 v[20:21], v12")
    A("ds_read_b64_tr_b16 v[22:23], v12 offset:1024")
    A("ds_read_b64_tr_b16 v[24:25], v12 offset:8")
    A("ds_read_b64_tr_b16 v[26:27], v12 offset:1032")
    A("s_mul_i32 s76, s74, 56")
    A("s_add_u32 s76, s76, s73")
    A("s_lshl_b32 s76, s76, 2")
    A("s_lshl_b32 s77, s75, 1")
    A("s_add_u32 s76, s76, s77")
    A("s_lshl_b32 s76, s76, 10")
    A("s_waitcnt lgkmcnt(0)")
    A("buffer_store_dwordx4 v[20:23], v6, s[52:55], s76 offen")
    A("buffer_store_dwordx4 v[24:27], v6, s[52:55], s76 offen offset:1024")
    A.label("L_prep_now2b")
    A("v_and_b32 v8, 15, v1")
    A("v_cmp_eq_u32 s[88:89], 15, v8")
    A("v_add_u32 v8, 1, v8")
    A("v_cvt_f32_u32 v8, v8")
    A("v_lshrrev_b32 v9, 4, v1")
    A("s_lshl_b32 s60, s37, 10")
    A(f"s_add_u32 s60, s60, {L_PAR}")
    A("v_lshlrev_b32 v9, 6, v9")
    A("v_add_u32 v9, s60, v9")
    ACC = 64
    for i in range(16): A(f"v_mov_b32 v{ACC+i}, 0")
    PAR = 80
    F = 96
    T = 104
    G = 112
    BO = 120
    AO = 136
    A("s_waitcnt lgkmcnt(0)")
    for s in range(4):
        for j in range(4):
            A(f"ds_read_b128 v[{PAR+4*j}:{PAR+4*j+3}], v9 offset:{s*256 + j*16}")
        A("s_waitcnt lgkmcnt(0)")
        for j in range(4):
            A(f"v_mul_f32 v{T+2*j}, v{PAR+4*j}, v8")
            A(f"v_mul_f32 v{T+2*j+1}, v{PAR+4*j+1}, v8")
        for j in range(4):
            A(f"v_exp_f32 v{T+2*j}, v{T+2*j}")
            A(f"v_fract_f32 v{T+2*j+1}, v{T+2*j+1}")
        for j in range(4):
            A(f"v_cos_f32 v{F+2*j}, v{T+2*j+1}")
            A(f"v_sin_f32 v{F+2*j+1}, v{T+2*j+1}")
        for j in range(4):
            A(f"v_pk_mul_f32 v[{F+2*j}:{F+2*j+1}], v[{F+2*j}:{F+2*j+1}], v[{T+2*j}:{T+2*j+1}] op_sel:[0,0] op_sel_hi:[1,0]")
        def square():
            for j in range(4):
                f = f"v[{F+2*j}:{F+2*j+1}]"; t = f"v[{T+2*j}:{T+2*j+1}]"
                A(f"v_pk_mul_f32 {t}, {f}, {f} op_sel:[0,0] op_sel_hi:[0,1]")
            for j in range(4):
                f = f"v[{F+2*j}:{F+2*j+1}]"; t = f"v[{T+2*j}:{T+2*j+1}]"
                A(f"v_pk_fma_f32 {f}, {f}, {f}, {t} op_sel:[1,1,0] op_sel_hi:[1,0,1] neg_lo:[1,0,0]")
        for z in range(4):
            if z > 0: square()
            for j in range(4):
                A(f"v_cvt_pk_bf16_f32 v{BO+4*z+j}, v{F+2*j}, v{F+2*j+1}")
        for z in range(4):
            square()
            for j in range(4):
                f = f"v[{F+2*j}:{F+2*j+1}]"; t = f"v[{T+2*j}:{T+2*j+1}]"; c = f"v[{PAR+4*j+2}:{PAR+4*j+3}]"
                A(f"v_pk_mul_f32 {t}, {c}, {f} op_sel:[0,0] op_sel_hi:[0,1]")
            for j in range(4):
                f = f"v[{F+2*j}:{F+2*j+1}]"; t = f"v[{T+2*j}:{T+2*j+1}]"; c = f"v[{PAR+4*j+2}:{PAR+4*j+3}]"
                g = f"v[{G+2*j}:{G+2*j+1}]"
                A(f"v_pk_fma_f32 {g}, {c}, {f}, {t} op_sel:[1,1,0] op_sel_hi:[1,0,1] neg_lo:[1,0,0]")
            if z == 0:
                for j in range(4):
                    A(f"v_cndmask_b32 v{G+2*j}, v{G+2*j}, v{PAR+4*j+2}, s[88:89]")
                    A(f"v_cndmask_b32 v{G+2*j+1}, v{G+2*j+1}, v{PAR+4*j+3}, s[88:89]")
            for j in range(4):
                A(f"v_cvt_pk_bf16_f32 v{AO+4*z+j}, v{G+2*j}, -v{G+2*j+1}")
        for z in range(4):
            A(f"v_mfma_f32_16x16x32_bf16 v[{ACC+4*z}:{ACC+4*z+3}], v[{AO+4*z}:{AO+4*z+3}], v[{BO+4*z}:{BO+4*z+3}], v[{ACC+4*z}:{ACC+4*z+3}]")
    A("s_lshl_b32 s60, s38, 12")
    A(f"s_add_u32 s60, s60, {L_PART}")
    A("v_add_u32 v10, s60, v6")
    A("s_cmp_eq_u32 s39, 0")
    A("s_cbranch_scc1 L_prep_h0a")
    for z in range(4):
        A(f"ds_write_b128 v10, v[{ACC+4*z}:{ACC+4*z+3}] offset:{z*1024}")
    A.label("L_prep_h0a")
    A("s_waitcnt vmcnt(0) lgkmcnt(0)")
    A("s_barrier")
    A("s_cmp_eq_u32 s39, 0")
    A("s_cbranch_scc0 L_prep_h1b")
    for z in range(4):
        A(f"ds_read_b128 v[{PAR+4*z}:{PAR+4*z+3}], v10 offset:{z*1024}")
    A("s_lshl_b32 s61, s38, 3")
    A(f"s_add_u32 s61, s61, {L_K0}")
    A("v_mov_b32 v11, s61")
    A("ds_read_b64 v[12:13], v11")
    A("v_lshrrev_b32 v14, 4, v1")
    A("v_lshlrev_b32 v14, 2, v14")
    A("v_and_b32 v15, 15, v1")
    A("v_lshlrev_b32 v15, 1, v15")
    A("v_add_u32 v15, s80, v15")
    for r in range(4):
        A(f"v_add_u32 v{16+r}, {r+1}, v14")
        A(f"v_and_b32 v{16+r}, 15, v{16+r}")
        A(f"v_lshl_add_u32 v{16+r}, v{16+r}, 5, v15")
    A("s_waitcnt lgkmcnt(0)")
    for z in range(4):
        for r in range(4):
            A(f"v_add_f32 v{ACC+4*z+r}, v{ACC+4*z+r}, v{PAR+4*z+r}")
        A(f"v_cvt_pk_bf16_f32 v{T+2*z}, v{ACC+4*z}, v{ACC+4*z+1}")
        A(f"v_cvt_pk_bf16_f32 v{T+2*z+1}, v{ACC+4*z+2}, v{ACC+4*z+3}")
        A(f"ds_write_b16 v16, v{T+2*z} offset:{z*512}")
        A(f"ds_write_b16_d16_hi v17, v{T+2*z} offset:{z*512}")
        A(f"ds_write_b16 v18, v{T+2*z+1} offset:{z*512}")
        A(f"ds_write_b16_d16_hi v19, v{T+2*z+1} offset:{z*512}")
    A("v_add_f32 v12, v12, v13")
    A("v_cvt_pk_bf16_f32 v12, v12, v12")
    A("s_sub_u32 s61, s80, 2")
    A("v_mov_b32 v11, s61")
    A("ds_write_b16 v11, v12")
    A.label("L_prep_h1b")
    A("v_lshrrev_b32 v12, 4, v1")
    A("v_lshlrev_b32 v12, 3, v12")
    A("v_bfe_u32 v13, v1, 2, 2")
    A("v_add_u32 v12, v12, v13")
    A("v_lshlrev_b32 v12, 7, v12")
    A("v_and_b32 v13, 3, v1")
    A("v_lshl_add_u32 v12, v13, 3, v12")
    A("s_lshl_b32 s63, s37, 5")
    A(f"s_add_u32 s63, s63, {L_UT}")
    A("v_add_u32 v12, s63, v12")
    A("ds_read_b64_tr_b16 v[20:21], v12")
    A("ds_read_b64_tr_b16 v[22:23], v12 offset:512")
    A("ds_read_b64_tr_b16 v[24:25], v12 offset:4096")
    A("ds_read_b64_tr_b16 v[26:27], v12 offset:4608")
    A("s_lshr_b32 s60, s36, 3")
    A("s_and_b32 s61, s36, 7")
    A("s_lshl_b32 s61, s61, 18")
    A("s_lshl_b32 s62, s37, 16")
    A("s_add_u32 s61, s61, s62")
    A("s_lshl_b32 s60, s60, 7")
    A("s_add_u32 s61, s61, s60")
    A("v_and_b32 v13, 15, v1")
    A("v_lshlrev_b32 v13, 12, v13")
    A("v_lshrrev_b32 v14, 4, v1")
    A("v_lshl_add_u32 v13, v14, 4, v13")
    A("s_waitcnt lgkmcnt(0)")
    A("buffer_store_dwordx4 v[20:23], v13, s[48:51], s61 offen")
    A("buffer_store_dwordx4 v[24:27], v13, s[48:51], s61 offen offset:64")
    A("s_barrier")
    for n2 in range(2):
        for k in range(4):
            A(f"ds_read_u16_d16 v{80+n2*8+2*k}, v{32+n2*8+7-2*k}")
            A(f"ds_read_u16_d16_hi v{80+n2*8+2*k+1}, v{32+n2*8+6-2*k}")
    A(f"s_mul_i32 s60, s42, {KR_STRIDE}")
    A("s_lshl_b32 s61, s39, 11")
    A("s_sub_u32 s60, s60, s61")
    A(f"s_add_u32 s60, s60, {255*16 - 1024}")
    A("v_sub_u32 v12, 0, v6")
    A("v_add_u32 v12, s60, v12")
    A("s_waitcnt lgkmcnt(0)")
    for n2 in range(2):
        for k in range(4):
            A(f"v_or_b32 v{96+n2*4+k}, v{80+n2*8+2*k}, v{80+n2*8+2*k+1}")
    A("buffer_store_dwordx4 v[96:99], v12, s[44:47], 0 offen offset:1024")
    A("buffer_store_dwordx4 v[100:103], v12, s[44:47], 0 offen")
    A("s_cmp_eq_u32 s39, 0")
    A("s_cbranch_scc0 L_prep_end")
    for i in range(4): A(f"v_mov_b32 v{104+i}, 0")
    A(f"s_mul_i32 s60, s42, {KR_STRIDE}")
    A("s_add_u32 s60, s60, 4096")
    A("v_cmp_gt_u32 vcc, 4, v1")
    A("s_and_saveexec_b64 s[86:87], vcc")
    A("buffer_store_dwordx4 v[104:107], v6, s[44:47], s60 offen")
    A.label("L_prep_end")
    A("s_endpgm")
```

```python
import sys
from gen_common import *
from gen_prep import gen_prep
from gen_gemm1 import gen_gemm1

def k1():
    A = Asm()
    A("s_cmp_ge_u32 s2, 512")
    A("s_cbranch_scc1 L_k1_exit")
    A("s_cmp_ge_u32 s2, 256")
    A("s_cbranch_scc1 L_prep")
    gen_gemm1(A)
    gen_prep(A)
    A.label("L_k1_exit")
    A("s_endpgm")
    return A.finish()

def main(path, with_k2=True):
    hdr = open("cdna_kernels/" + NAME + ".s.ref").read().split("\n")
    top = [l for l in hdr if l.startswith(";") and "@launch" not in l and "Override launch" not in l and "grid=ceil" not in l]
    top = top[:[i for i, l in enumerate(top) if "offset 120" in l][0] + 1]
    out = "\n".join(top) + "\n"
    k1n = "ssm_ffn_stage1_kernel"; k2n = NAME + "_kernel"
    out += f"; @launch kernel={k1n} grid=(512,1,1) block=(256,1,1) lds=79360\n"
    if with_k2:
        out += f"; @launch kernel={k2n} grid=(512,1,1) block=(256,1,1) lds=75776\n"
    out += '.amdgcn_target "amdgcn-amd-amdhsa--gfx950"\n.text\n'
    out += kernel_header(k1n) + k1() + "\n"
    if with_k2:
        from gen_k2 import k2
        out += kernel_header(k2n) + k2() + "\n"
    out += kernel_desc(k1n, 256, 102)
    if with_k2: out += kernel_desc(k2n, 256, 102)
    open(path, "w").write(out)

if __name__ == "__main__":
    main(sys.argv[1], with_k2=(len(sys.argv) < 3 or sys.argv[2] != "nok2"))
```

```python
import re

TRANS = ("v_exp_f32", "v_log_f32", "v_rcp_f32", "v_rsq_f32", "v_sqrt_f32", "v_sin_f32", "v_cos_f32")

def _regs(tok):
    tok = tok.strip()
    neg = tok.lstrip("-")
    if neg.startswith("abs(") or neg.startswith("|"):
        neg = neg.replace("abs(", "").replace(")", "").replace("|", "")
    m = re.fullmatch(r"([vsa])(\d+)", neg)
    if m: return {(m.group(1), int(m.group(2)))}
    m = re.fullmatch(r"([vsa])\[(\d+):(\d+)\]", neg)
    if m: return {(m.group(1), i) for i in range(int(m.group(2)), int(m.group(3)) + 1)}
    if neg == "vcc": return {("s", "vcc")}
    if neg in ("vcc_lo", "vcc_hi"): return {("s", "vcc")}
    if neg == "m0": return {("s", "m0")}
    if neg in ("exec", "exec_lo", "exec_hi"): return {("s", "exec")}
    return set()

class Ins:
    __slots__ = ("text", "op", "dst", "src", "kind", "passes", "srcc", "dpp", "lds", "wide", "nstates")
    def __init__(self, text):
        self.text = text
        body = text.split(";")[0].strip()
        parts = body.split(None, 1)
        self.op = op = parts[0]
        rest = parts[1] if len(parts) > 1 else ""
        ops, depth, cur = [], 0, ""
        for ch in rest:
            if ch in "[(": depth += 1
            if ch in "])": depth -= 1
            if ch == "," and depth == 0: ops.append(cur); cur = ""
            else: cur += ch
        if cur.strip(): ops.append(cur)
        toks = []
        mods = ""
        for i, o in enumerate(ops):
            o = o.strip()
            sp = o.split()
            toks.append(sp[0] if sp else "")
            if len(sp) > 1: mods += " " + " ".join(sp[1:])
        self.dst, self.src, self.srcc = set(), set(), set()
        self.passes = 0; self.dpp = ("row_" in mods or "quad_perm" in mods or "wave_" in mods or "dpp" in op)
        self.lds = False; self.wide = False; self.nstates = 1
        R = [_regs(t) for t in toks]
        if op == "s_nop":
            self.kind = "nop"; self.nstates = int(toks[0], 0) + 1
        elif op.startswith("v_mfma"):
            self.kind = "mfma"; self.dst = R[0]; self.src = R[1] | R[2] | R[3]; self.srcc = R[3]
            self.passes = 8 if "32x32" in op else 4
        elif op.startswith("v_cmp"):
            self.kind = "valu"; self.dst = R[0]
            for r in R[1:]: self.src |= r
        elif op.startswith("v_writelane"):
            self.kind = "valu"; self.dst = R[0]; self.src = R[0] | R[1]
        elif op.startswith("v_readfirstlane") or op.startswith("v_readlane"):
            self.kind = "valu"; self.dst = R[0]
            for r in R[1:]: self.src |= r
        elif op.startswith("v_"):
            self.kind = "trans" if op.replace("_e32", "").replace("_e64", "") in TRANS else "valu"
            self.dst = R[0]
            start = 1
            if op.startswith(("v_add_co", "v_sub_co", "v_addc_co", "v_subb_co", "v_subrev_co")):
                self.dst |= R[1]; start = 2
            for r in R[start:]: self.src |= r
            if op.startswith(("v_fmac", "v_mac", "v_pk_fmac")): self.src |= R[0]
            if op.startswith("v_cndmask") and len(toks) == 3: self.src |= {("s", "vcc")}
            if op.startswith("v_permlane") or op.startswith("v_swap"):
                self.dst |= R[1]; self.src |= R[0]
            if self.dpp: self.src |= R[0]
        elif op.startswith(("buffer_", "global_")):
            self.kind = "vmem"
            self.lds = bool(re.search(r"\blds\b", mods)) or "_lds_" in op
            is_store = "store" in op
            is_atomic = "atomic" in op
            if self.lds:
                for r in R: self.src |= r
                self.src |= {("s", "m0")}
            elif is_store or is_atomic:
                for r in R: self.src |= r
                if is_atomic and "sc0" in mods: self.dst = R[0] if op.startswith("buffer_") else R[0]
                self.wide = is_store and ("x4" in op or "x3" in op)
            else:
                self.dst = R[0]
                for r in R[1:]: self.src |= r
        elif op.startswith("ds_"):
            self.kind = "ds"
            if "read" in op or "bpermute" in op or "swizzle" in op:
                self.dst = R[0]
                for r in R[1:]: self.src |= r
            else:
                for r in R: self.src |= r
        elif op.startswith("s_"):
            self.kind = "salu"
            if op.startswith(("s_cmp", "s_cbranch", "s_branch", "s_waitcnt", "s_barrier", "s_endpgm", "s_setprio", "s_sleep", "s_bitcmp")):
                for r in R: self.src |= r
            else:
                self.dst = R[0] if R else set()
                for r in R[1:]: self.src |= r
        else:
            raise ValueError("unknown op " + text)

def need(p, c):
    n = 0
    pv = {r for r in p.dst if r[0] in "va"}
    ps = {r for r in p.dst if r[0] == "s"}
    cvalu = c.kind in ("valu", "trans")
    if p.kind in ("valu", "trans"):
        if c.kind == "mfma" and pv & c.src: n = max(n, 2)
        if p.kind == "trans" and c.kind in ("valu", "mfma") and pv & c.src: n = max(n, 1)
        if p.kind == "trans" and c.kind in ("vmem", "ds") and pv & c.src: n = max(n, 1)
        if cvalu and ps & c.src: n = max(n, 2)
        if c.kind == "vmem" and ps & c.src: n = max(n, 5)
        if c.kind == "salu" and ps & c.src: n = max(n, 1)
        if c.op.startswith(("v_readlane", "v_readfirstlane")) and pv & c.src: n = max(n, 1)
        if c.op.startswith(("v_readlane", "v_writelane")) and ps & c.src: n = max(n, 4)
        if cvalu and c.dpp and pv & c.src: n = max(n, 2)
        if c.op.startswith("v_permlane") and pv & c.src: n = max(n, 2)
    if p.op.startswith("v_dot2") and c.kind in ("valu", "trans", "vmem", "ds", "mfma"):
        if c.op != p.op and pv & (c.src | c.dst): n = max(n, 3)
    if p.kind == "mfma":
        big = p.passes == 8
        if c.kind == "mfma":
            if p.dst & (c.src - c.srcc): n = max(n, 12 if big else 8)
            if p.dst & c.srcc and p.dst != c.srcc: n = max(n, 10 if big else 6)
            if p.dst & c.dst and p.dst != c.dst: n = max(n, 10 if big else 6)
        elif c.kind in ("valu", "trans", "vmem", "ds"):
            if p.dst & (c.src | c.dst): n = max(n, 12 if big else 8)
            if cvalu and p.srcc & c.dst: n = max(n, 7 if big else 3)
    if p.kind == "vmem" and p.wide and cvalu:
        if {r for r in p.src if r[0] in "va"} & c.dst: n = max(n, 2)
    if p.kind == "vmem" and p.wide and c.kind in ("vmem", "ds", "mfma"):
        if {r for r in p.src if r[0] in "va"} & c.dst: n = max(n, 2)
    if p.kind == "ds" and cvalu and ("write_b128" in p.op or "write_b96" in p.op):
        if {r for r in p.src if r[0] in "va"} & c.dst: n = max(n, 2)
    if p.kind == "salu" and ("s", "m0") in p.dst and c.kind == "vmem" and c.lds: n = max(n, 1)
    if p.kind == "salu" and ("s", "exec") in p.dst and c.kind == "mfma": n = max(n, 4)
    return n

class Asm:
    def __init__(self):
        self.lines = []
    def __call__(self, text):
        for ln in text.split("\n"):
            ln = ln.strip()
            if ln: self.lines.append(ln)
    def label(self, name): self.lines.append(name + ":")
    def comment(self, t): self.lines.append("; " + t)
    def finish(self):
        out = []; hist = []
        nn = 0
        for ln in self.lines:
            if ln.startswith(";") or ln.endswith(":") or ln.startswith("."):
                out.append(ln); continue
            ins = Ins(ln)
            req = 0
            dist = 0
            for p in reversed(hist):
                r = need(p, ins)
                if r > dist: req = max(req, r - dist)
                dist += p.nstates
                if dist >= 20: break
            while req > 0:
                k = min(req, 16)
                nop = Ins(f"s_nop {k-1}")
                out.append("    " + nop.text); hist.append(nop); req -= k; nn += 1
            out.append("    " + ln); hist.append(ins)
            if len(hist) > 40: hist = hist[-40:]
        self.n_nops = nn
        return "\n".join(out)
```

```python
from emit import Asm

NAME = "gated_mix__ssm_conv_s4__dense_activation_silu__prompt"
KA = dict(u=0, A_re=8, A_im=16, B_re=24, B_im=32, C_re=40, C_im=48, log_dt=56, Dskip=64, x=72, w1=80, w2=88,
          gate_w=96, out=104, dbg=112, ws=120)
HF_OFF  = 0x0000000; HF_SIZE  = 32 * 56 * 4096
W2F_OFF = 0x0800000; W2F_SIZE = 8 * 56 * 4096
KR_OFF  = 0x0A00000; KR_STRIDE = 8320; KR1 = 4160; KR_SIZE = 512 * KR_STRIDE + 64
UT_OFF  = 0x0F00000; UT_SIZE = 512 * 4096
G_OFF   = 0x1100000; G_SIZE = 2048 * 8
FL_OFF  = 0x1110000; FL_SIZE = 256 * 128
AT_OFF  = 0x1200000; AT_SIZE = 512 * 4096
SRD3 = 0x00020000
LOG2E = 0x3fb8aa3b
INV2PI = 0x3e22f983

def vr(a, n=1):
    return f"v{a}" if n == 1 else f"v[{a}:{a+n-1}]"
def sr(a, n=1):
    return f"s{a}" if n == 1 else f"s[{a}:{a+n-1}]"

def srd_from(A, dst, base_lo, off, size):
    if off:
        A(f"s_add_u32 s{dst}, s{base_lo}, {off:#x}")
        A(f"s_addc_u32 s{dst+1}, s{base_lo+1}, 0")
    else:
        A(f"s_mov_b32 s{dst}, s{base_lo}")
        A(f"s_mov_b32 s{dst+1}, s{base_lo+1}")
    A(f"s_mov_b32 s{dst+2}, {size:#x}")
    A(f"s_mov_b32 s{dst+3}, {SRD3:#x}")

def kernel_header(name):
    return f""".globl {name}
.p2align 8
.type {name},@function
{name}:
"""

def kernel_desc(name, vgpr, sgpr):
    acc = (vgpr + 3) // 4 * 4
    return f""".section .rodata,"a"
.p2align 6
.amdhsa_kernel {name}
  .amdhsa_next_free_vgpr {vgpr}
  .amdhsa_next_free_sgpr {sgpr}
  .amdhsa_accum_offset {acc}
  .amdhsa_group_segment_fixed_size 0
  .amdhsa_kernarg_size 128
  .amdhsa_user_sgpr_count 2
  .amdhsa_user_sgpr_kernarg_segment_ptr 1
  .amdhsa_system_sgpr_workgroup_id_x 1
.end_amdhsa_kernel
"""

TS_OFF = 0x1800000
import os
STORE_MOD = os.environ.get('STORE_MOD', 'sc1')
if STORE_MOD: STORE_MOD = ' ' + STORE_MOD
STAMPS = os.environ.get("STAMPS") == "1"
class Stamper:
    def __init__(self, A, kidx, vreg=200): self.A = A; self.n = 0; self.k = kidx; self.v = vreg
    def stamp(self):
        if not STAMPS: return
        assert self.n < 15
        self.A("s_memtime s[98:99]")
        self.A("s_waitcnt lgkmcnt(0)")
        self.A(f"v_writelane_b32 v{self.v}, s98, {self.n}")
        self.n += 1
    def start(self):
        if not STAMPS: return
        self.A(f"v_mov_b32 v{self.v}, 0")
        self.A("s_memrealtime s[100:101]")
        self.stamp()
        self.A(f"v_writelane_b32 v{self.v}, s100, 15")
    def flush(self, ws_lo, wave_sgpr):
        if not STAMPS: return
        A = self.A
        A("s_waitcnt vmcnt(0) lgkmcnt(0)")
        A(f"s_add_u32 s76, s{ws_lo}, {TS_OFF + self.k * 0x40000:#x}")
        A(f"s_addc_u32 s77, s{ws_lo+1}, 0")
        A("s_mov_b32 s78, 0x40000")
        A(f"s_mov_b32 s79, {SRD3:#x}")
        A("s_lshl_b32 s80, s2, 2")
        A(f"s_add_u32 s80, s80, s{wave_sgpr}")
        A("s_lshl_b32 s80, s80, 6")
        A("s_mov_b64 exec, -1")
        A("v_mbcnt_lo_u32_b32 v250, -1, 0")
        A("v_lshlrev_b32 v250, 2, v250")
        A("s_mov_b64 exec, 0xffff")
        A(f"buffer_store_dword v{self.v}, v250, s[76:79], s80 offen")
        A("s_waitcnt vmcnt(0)")
```

```python
from gen_common import *
import os

XS = 16384; NX = 3
WB = NX * XS; WS = 8192; NW = 4
NCH = 16

def gen_gemm1(A):
    A.label("L_gemm1")
    A("s_cmp_ge_u32 s2, 480")
    A("s_cbranch_scc1 L_k1_exit")
    S = Stamper(A, 0, 210); S.start()
    if os.environ.get("G1PRIO"): A("s_setprio " + os.environ["G1PRIO"])
    A("s_load_dwordx2 s[4:5], s[0:1], 0")
    A("s_load_dwordx2 s[6:7], s[0:1], 80")
    A("s_load_dwordx2 s[8:9], s[0:1], 120")
    A("v_lshrrev_b32 v2, 6, v0")
    A("v_and_b32 v1, 63, v0")
    A("v_readfirstlane_b32 s20, v2")
    A("s_and_b32 s21, s2, 7")
    A("s_sub_u32 s22, s2, 256")
    A("s_lshr_b32 s22, s22, 3")
    A("s_mul_i32 s25, s22, 37")
    A("s_lshr_b32 s25, s25, 8")
    A("s_mul_i32 s26, s25, 7")
    A("s_sub_u32 s26, s22, s26")
    A("s_lshr_b32 s23, s21, 1")
    A("s_lshl_b32 s23, s23, 2")
    A("s_add_u32 s23, s23, s25")
    A("s_and_b32 s24, s21, 1")
    A("s_mul_i32 s24, s24, 7")
    A("s_add_u32 s24, s24, s26")
    A("v_lshrrev_b32 v3, 3, v1")
    A("v_and_b32 v4, 7, v1")
    A("v_lshrrev_b32 v5, 4, v1")
    A("v_xor_b32 v4, v4, v5")
    A("v_lshlrev_b32 v3, 10, v3")
    A("v_lshl_add_u32 v200, v4, 4, v3")
    A("v_xor_b32 v201, 64, v200")
    A(f"v_add_u32 v201, {7168}, v201")
    A(f"v_add_u32 v202, {2*7168}, v200")
    A(f"v_add_u32 v203, {2*7168}, v201")
    A("v_lshrrev_b32 v3, 4, v1")
    A("v_and_b32 v4, 15, v1")
    A("v_lshlrev_b32 v5, 1, v3")
    A("v_xor_b32 v4, v4, v5")
    A("s_and_b32 s27, s20, 1")
    A("s_lshl_b32 s27, s27, 3")
    A("v_xor_b32 v4, s27, v4")
    A("v_mul_u32_u24 v3, 3584, v3")
    A("v_lshl_add_u32 v11, v4, 4, v3")
    A(f"v_add_u32 v9, {4*3584 - 1024}, v11")
    A("s_lshl_b32 s32, s23, 17")
    A("s_lshl_b32 s33, s20, 15")
    A("s_add_u32 s32, s32, s33")
    A("s_lshl_b32 s34, s24, 8")
    A(f"s_mul_i32 s35, s20, {8*3584}")
    A("s_add_u32 s34, s34, s35")
    A("s_lshl_b32 s36, s20, 12")
    A("s_lshl_b32 s35, s20, 11")
    A("s_lshl_b32 s44, s22, 2")
    A("s_add_u32 s44, s44, s20")
    A("s_lshl_b32 s44, s44, 6")
    A("v_add_u32 v3, s44, v1")
    A("v_lshlrev_b32 v204, 7, v3")
    A("v_mul_u32_u24 v4, 74899, v3")
    A("v_lshrrev_b32 v4, 20, v4")
    A("v_mul_u32_u24 v5, 14, v4")
    A("v_sub_u32 v5, v3, v5")
    A("v_mul_u32_u24 v4, 3584, v4")
    A("v_lshl_add_u32 v205, v5, 7, v4")
    A("s_and_b32 s45, s21, 1")
    A("s_mul_i32 s45, s45, 1792")
    A("s_lshr_b32 s46, s21, 1")
    A("s_lshl_b32 s46, s46, 19")
    A("s_waitcnt lgkmcnt(0)")
    srd_from(A, 12, 4, 0, 2048 * 1024)
    srd_from(A, 16, 6, 0, 512 * 3584)
    seq = []
    def issue_x(X):
        seq.append((("X", X), 4))
        return [f"s_add_u32 m0, s36, {(X % NX) * XS}"] + [f"buffer_load_dwordx4 v{200+i}, s[12:15], s32 offen offset:{1024*i} lds" for i in range(4)] + ["s_add_u32 s32, s32, 128"]
    def issue_w(c):
        seq.append((("W", c), 2))
        return [f"s_add_u32 m0, s35, {WB + (c % NW) * WS}",
                "buffer_load_dwordx4 v11, s[16:19], s34 offen lds",
                "buffer_load_dwordx4 v9, s[16:19], s34 offen offset:1024 lds",
                f"s_add_u32 s34, s34, {32*3584}"]
    def allowed(c):
        last = max(i for i, (t, n) in enumerate(seq) if t in (("X", c >> 1), ("W", c)))
        return sum(n for (t, n) in seq[last + 1:])
    FINE = os.environ.get("FINE") == "1"
    if FINE: S.stamp()
    for x in issue_x(0): A(x)
    if FINE: S.stamp()
    for x in issue_w(0) + issue_w(1): A(x)
    if FINE: S.stamp()
    if os.environ.get("NOPF1") != "1":
        A("s_add_u32 s48, s4, s46")
        A("s_addc_u32 s49, s5, 0")
        A("s_mov_b32 s50, 0x80000")
        A(f"s_mov_b32 s51, {SRD3:#x}")
        A("buffer_load_dword v206, v205, s[16:19], s45 offen")
        A("buffer_load_dword v207, v204, s[48:51], 0 offen")
        seq.append((("P", 0), 2))
    if FINE: S.stamp()
    for x in issue_x(1): A(x)
    if FINE: S.stamp()
    for x in issue_w(2) + issue_w(3) + issue_x(2): A(x)
    S.stamp()
    srd_from(A, 28, 8, HF_OFF, HF_SIZE)
    A("s_lshr_b32 s37, s20, 1")
    A("s_and_b32 s38, s20, 1")
    A("v_and_b32 v3, 15, v1")
    A("v_lshrrev_b32 v4, 1, v3")
    A("v_lshrrev_b32 v5, 4, v1")
    A("v_xor_b32 v4, v4, v5")
    A("v_lshlrev_b32 v3, 7, v3")
    A("v_lshl_add_u32 v12, v4, 4, v3")
    A("s_lshl_b32 s39, s37, 13")
    A("v_add_u32 v12, s39, v12")
    A("v_xor_b32 v13, 64, v12")
    A("v_bfe_u32 v4, v1, 2, 2")
    A("v_and_b32 v3, 1, v5")
    A("v_lshlrev_b32 v3, 2, v3")
    A("s_lshl_b32 s39, s38, 2")
    A("v_xor_b32 v3, s39, v3")
    A("v_xor_b32 v3, v3, v4")
    A("v_lshlrev_b32 v6, 11, v5")
    A("v_lshl_add_u32 v6, v4, 8, v6")
    A("v_and_b32 v7, 3, v1")
    A("v_lshl_add_u32 v6, v7, 3, v6")
    A(f"v_add_u32 v6, {WB}, v6")
    for p in range(4):
        A(f"v_xor_b32 v7, {p}, v3")
        A(f"v_lshl_add_u32 v{14+p}, v7, 5, v6")
    ACC = 24
    FR = [88, 120]
    for i in range(64): A(f"v_mov_b32 v{ACC+i}, 0")
    def reads(ch):
        f = FR[ch % 2]
        xo = ((ch >> 1) % NX) * XS; wo = (ch % NW) * WS
        xs = [f"ds_read_b128 v[{f+4*tt}:{f+4*tt+3}], v{12 + (ch & 1)} offset:{xo + tt*2048}" for tt in range(4)]
        ws = []
        for p in range(4):
            ws.append(f"ds_read_b64_tr_b16 v[{f+16+4*p}:{f+17+4*p}], v{14+p} offset:{wo}")
            ws.append(f"ds_read_b64_tr_b16 v[{f+18+4*p}:{f+19+4*p}], v{14+p} offset:{wo+1024}")
        return xs + ws
    def mfmas(ch):
        f = FR[ch % 2]; lst = []
        for p in range(4):
            for tt in range(4):
                a = ACC + (tt * 4 + p) * 4
                lst.append(f"v_mfma_f32_16x16x32_bf16 v[{a}:{a+3}], v[{f+16+4*p}:{f+19+4*p}], v[{f+4*tt}:{f+4*tt+3}], v[{a}:{a+3}]")
        return lst
    A(f"s_waitcnt vmcnt({allowed(0)})")
    A("s_barrier")
    for x in reads(0): A(x)
    S.stamp()
    for j in range(NCH - 1):
        A(f"s_waitcnt vmcnt({allowed(j + 1)}) lgkmcnt(0)")
        A("s_barrier")
        iss = []
        if j + NW < NCH: iss += issue_w(j + NW)
        if j % 2 == 1 and (j >> 1) + NX < NCH // 2: iss += issue_x((j >> 1) + NX)
        rd = reads(j + 1); mf = mfmas(j)
        other = iss[:4] + rd[:6] + iss[4:] + rd[6:]
        for m in mf:
            A(m)
            for _ in range(2):
                if other: A(other.pop(0))
        assert not other
        if j == 7: S.stamp()
    S.stamp()
    A("s_waitcnt lgkmcnt(0)")
    for m in mfmas(NCH - 1): A(m)
    S.stamp()
    A("v_lshlrev_b32 v14, 4, v1")
    A("s_lshl_b32 s40, s23, 1")
    A("s_add_u32 s40, s40, s37")
    A("s_mul_i32 s41, s40, 56")
    A("s_lshl_b32 s42, s24, 2")
    A("s_add_u32 s41, s41, s42")
    A("s_lshl_b32 s42, s38, 1")
    A("s_add_u32 s41, s41, s42")
    A("s_lshl_b32 s41, s41, 12")
    A("s_add_u32 s43, s41, 4096")
    NL2E = LOG2E ^ 0x80000000
    A(f"s_mov_b32 s46, {NL2E:#x}")
    A("s_mov_b32 s47, s46")
    A("s_mov_b32 s48, 1.0")
    A("s_mov_b32 s49, 1.0")
    P = 88
    def silu_pack(a, dst, t):
        for h in range(2):
            A(f"v_pk_mul_f32 v[{t+2*h}:{t+1+2*h}], v[{a+2*h}:{a+2*h+1}], s[46:47]")
        for k in range(4): A(f"v_exp_f32 v{t+k}, v{t+k}")
        for h in range(2):
            A(f"v_pk_add_f32 v[{t+2*h}:{t+1+2*h}], v[{t+2*h}:{t+1+2*h}], s[48:49]")
        for k in range(4): A(f"v_rcp_f32 v{t+k}, v{t+k}")
        for h in range(2):
            A(f"v_pk_mul_f32 v[{a+2*h}:{a+2*h+1}], v[{a+2*h}:{a+2*h+1}], v[{t+2*h}:{t+1+2*h}]")
        for h in range(2):
            A(f"v_cvt_pk_bf16_f32 v{dst+h}, v{a+2*h}, v{a+2*h+1}")
    n = 0
    for kk in range(2):
        for tt in range(4):
            d = P + (n % 8) * 4; n += 1
            for i in range(2):
                silu_pack(ACC + (tt * 4 + 2 * kk + i) * 4, d + 2 * i, 124 + 4 * i)
            A(f"buffer_store_dwordx4 v[{d}:{d+3}], v14, s[28:31], s{41 if kk == 0 else 43} offen offset:{tt*1024}{STORE_MOD}")
    S.stamp()
    if STAMPS:
        A("s_waitcnt vmcnt(0)"); S.stamp(); S.flush(8, 20)
    A("s_endpgm")
```

```python
from gen_common import *
import os

CH_STRIDE = 37888; CP = 4160; U_OFF = 33280
RED = 0; AT_L = 65536; AT_S = 144

def gen_gemm2(A):
    A.label("L_gemm2")
    S = Stamper(A, 1, 60); S.start()
    A("s_load_dwordx4 s[4:7], s[0:1], 104")
    A("s_load_dwordx2 s[8:9], s[0:1], 120")
    A("v_lshrrev_b32 v2, 6, v0")
    A("v_and_b32 v1, 63, v0")
    A("v_readfirstlane_b32 s20, v2")
    A("s_sub_u32 s47, s2, 256")
    A("s_and_b32 s21, s47, 7")
    A("s_lshr_b32 s22, s47, 3")
    A("s_lshl_b32 s23, s21, 2")
    A("s_lshr_b32 s24, s22, 3")
    A("s_add_u32 s23, s23, s24")
    A("s_and_b32 s24, s22, 7")
    A("v_lshlrev_b32 v3, 4, v1")
    A(f"s_mul_i32 s25, s20, {14*4096}")
    A("v_add_u32 v4, s25, v3")
    A(f"s_mul_i32 s26, s23, {56*4096}")
    A(f"s_mul_i32 s27, s24, {56*4096}")
    A("s_waitcnt lgkmcnt(0)")
    A("s_add_u32 s12, s8, s26")
    A("s_addc_u32 s13, s9, 0")
    A(f"s_mov_b32 s14, {56*4096}")
    A(f"s_mov_b32 s15, {SRD3:#x}")
    A(f"s_add_u32 s16, s8, {W2F_OFF:#x}")
    A("s_addc_u32 s17, s9, 0")
    A("s_add_u32 s16, s16, s27")
    A("s_addc_u32 s17, s17, 0")
    A(f"s_mov_b32 s18, {56*4096}")
    A(f"s_mov_b32 s19, {SRD3:#x}")
    SET = [64, 96, 128, 160]; ACC = 192
    def issue(i):
        s = SET[i % 4]
        A(f"s_mov_b32 s40, {i*4096}")
        for k in range(4):
            A(f"buffer_load_dwordx4 v[{s+4*k}:{s+4*k+3}], v4, s[12:15], s40 offen offset:{k*1024}")
            A(f"buffer_load_dwordx4 v[{s+16+4*k}:{s+16+4*k+3}], v4, s[16:19], s40 offen offset:{k*1024}")
    for i in range(3): issue(i)
    S.stamp()
    srd_from(A, 28, 8, AT_OFF, AT_SIZE)
    srd_from(A, 32, 8, G_OFF, G_SIZE)
    srd_from(A, 36, 4, 0, 2048 * 1024)
    srd_from(A, 44, 8, FL_OFF, FL_SIZE)
    for i in range(64): A(f"v_mov_b32 v{ACC+i}, 0")
    A("v_and_b32 v11, 31, v1")
    A("v_lshlrev_b32 v11, 2, v11")
    A("s_lshl_b32 s43, s24, 5")
    A("s_add_u32 s43, s43, s23")
    A("s_lshl_b32 s43, s43, 7")
    A("v_and_b32 v5, 15, v1")
    A("s_lshl_b32 s41, s23, 6")
    A("s_lshl_b32 s42, s20, 4")
    A("s_add_u32 s41, s41, s42")
    A("v_add_u32 v6, s41, v5")
    A("v_lshlrev_b32 v7, 3, v6")
    A("v_lshrrev_b32 v13, 3, v1")
    A("v_and_b32 v14, 7, v1")
    A("v_lshlrev_b32 v15, 12, v13")
    A("v_lshl_add_u32 v15, v14, 4, v15")
    A("s_lshl_b32 s50, s24, 18")
    A("s_lshl_b32 s51, s20, 16")
    A("s_add_u32 s50, s50, s51")
    A("s_lshl_b32 s51, s23, 7")
    A("s_add_u32 s50, s50, s51")
    A("s_add_u32 s52, s50, 0x8000")
    def a_loads():
        A("buffer_load_dwordx4 v[16:19], v15, s[28:31], s50 offen sc1")
        A("buffer_load_dwordx4 v[20:23], v15, s[28:31], s52 offen sc1")
    for i in range(14):
        if i + 3 < 14: issue(i + 3)
        if i == 7: A("buffer_load_dword v12, v11, s[44:47], s43 offen sc1")
        left = 8 * (min(13, i + 3) - i)
        if 7 <= i <= 10: left += 1
        if i >= 12: left += 3
        if i in (1, 7): S.stamp()
        A(f"s_waitcnt vmcnt({left})")
        if i == 11:
            A("v_cmp_eq_u32 vcc, 1, v12")
            A("s_cmp_eq_u64 vcc, -1")
            A("s_cselect_b32 s53, 1, 0")
            if os.environ.get("ONLY2") == "gemm2": A("s_mov_b32 s53, 1")
            a_loads()
            A("buffer_load_dwordx2 v[8:9], v7, s[32:35], 0 offen")
        s = SET[i % 4]
        for dt in range(4 if not os.environ.get("NOMFMA") else 0):
            for tt in range(4):
                a = ACC + (dt * 4 + tt) * 4
                A(f"v_mfma_f32_16x16x32_bf16 v[{a}:{a+3}], v[{s+16+4*dt}:{s+16+4*dt+3}], v[{s+4*tt}:{s+4*tt+3}], v[{a}:{a+3}]")
    S.stamp()
    A("s_lshl_b32 s42, s20, 12")
    A("v_add_u32 v10, s42, v3")
    for tt in range(4):
        for dt in range(4):
            a = ACC + (dt * 4 + tt) * 4
            A(f"ds_write_b128 v10, v[{a}:{a+3}] offset:{RED + tt*16384 + dt*1024}")
    A("s_cmp_eq_u32 s53, 1")
    A("s_cbranch_scc1 L_g2_go")
    A("s_mov_b32 s48, 0")
    A.label("L_g2_poll")
    A("buffer_load_dword v12, v11, s[44:47], s43 offen sc1")
    A("s_waitcnt vmcnt(0)")
    A("v_cmp_eq_u32 vcc, 1, v12")
    A("s_add_u32 s48, s48, 1")
    A("s_cmp_eq_u64 vcc, -1")
    A("s_cbranch_scc1 L_g2_got")
    A("s_cmp_lt_u32 s48, 0x40000")
    A("s_sleep 4")
    A("s_cbranch_scc1 L_g2_poll")
    A.label("L_g2_got")
    a_loads()
    A.label("L_g2_go")
    S.stamp()
    A(f"v_mul_u32_u24 v13, {AT_S}, v13")
    A("v_lshl_add_u32 v13, v14, 4, v13")
    A(f"s_mul_i32 s51, s20, {16*AT_S}")
    A(f"s_add_u32 s51, s51, {AT_L}")
    A("v_add_u32 v13, s51, v13")
    A("s_waitcnt vmcnt(0)")
    A("ds_write_b128 v13, v[16:19]")
    A(f"ds_write_b128 v13, v[20:23] offset:{8*AT_S}")
    A("s_waitcnt lgkmcnt(0)")
    A("s_barrier")
    A("s_lshl_b32 s42, s20, 14")
    A("v_add_u32 v10, s42, v3")
    S0 = 64
    for src in range(4):
        for dt in range(4):
            r = S0 + (src * 4 + dt) * 4
            A(f"ds_read_b128 v[{r}:{r+3}], v10 offset:{RED + src*4096 + dt*1024}")
    A("v_lshrrev_b32 v13, 4, v1")
    A("v_lshlrev_b32 v13, 3, v13")
    A("v_bfe_u32 v14, v1, 2, 2")
    A("v_add_u32 v13, v13, v14")
    A(f"v_mul_u32_u24 v13, {AT_S}, v13")
    A("v_and_b32 v14, 3, v1")
    A("v_lshl_add_u32 v13, v14, 3, v13")
    A("s_lshl_b32 s51, s20, 5")
    A(f"s_add_u32 s51, s51, {AT_L}")
    A("v_add_u32 v13, s51, v13")
    for dt in range(4):
        A(f"ds_read_b64_tr_b16 v[{24+2*dt}:{25+2*dt}], v13 offset:{(32*(dt>>1) + 4*(dt&1))*AT_S}")
    A("s_waitcnt lgkmcnt(0)")
    B = 128
    for dt in range(4):
        for r in range(4):
            x = [S0 + (src * 4 + dt) * 4 + r for src in range(4)]
            A(f"v_add_f32 v{x[0]}, v{x[0]}, v{x[1]}")
            A(f"v_add_f32 v{x[2]}, v{x[2]}, v{x[3]}")
            A(f"v_add_f32 v{B+dt*4+r}, v{x[0]}, v{x[2]}")
    O = 160
    for dt in range(4):
        for h in range(2):
            b0, b1 = B + dt * 4 + 2 * h, B + dt * 4 + 2 * h + 1
            ar = 24 + 2 * dt + h
            A(f"v_cvt_pk_bf16_f32 v32, v{b0}, v{b1}")
            A("v_lshlrev_b32 v33, 16, v32")
            A("v_and_b32 v34, 0xffff0000, v32")
            A("v_mul_f32 v33, v9, v33")
            A("v_mul_f32 v34, v9, v34")
            A("v_cvt_pk_bf16_f32 v32, v33, v34")
            A(f"v_lshlrev_b32 v35, 16, v{ar}")
            A(f"v_and_b32 v36, 0xffff0000, v{ar}")
            A("v_mul_f32 v35, v8, v35")
            A("v_mul_f32 v36, v8, v36")
            A("v_cvt_pk_bf16_f32 v37, v35, v36")
            A("v_lshlrev_b32 v33, 16, v32")
            A("v_and_b32 v34, 0xffff0000, v32")
            A("v_lshlrev_b32 v35, 16, v37")
            A("v_and_b32 v36, 0xffff0000, v37")
            A("v_add_f32 v33, v33, v35")
            A("v_add_f32 v34, v34, v36")
            A(f"v_cvt_pk_bf16_f32 v{O+dt*2+h}, v33, v34")
    A("v_lshlrev_b32 v6, 10, v6")
    A("v_lshrrev_b32 v13, 4, v1")
    A("v_lshl_add_u32 v6, v13, 4, v6")
    A("s_lshl_b32 s51, s24, 7")
    A(f"buffer_store_dwordx4 v[{O}:{O+3}], v6, s[36:39], s51 offen")
    A(f"buffer_store_dwordx4 v[{O+4}:{O+7}], v6, s[36:39], s51 offen offset:64")
    S.stamp()
    S.flush(8, 20)
    A("s_endpgm")

def gen_conv(A):
    A.label("L_conv")
    S = Stamper(A, 1); S.start()
    A("s_setprio 2")
    A("s_load_dwordx2 s[4:5], s[0:1], 64")
    A("s_load_dwordx2 s[10:11], s[0:1], 120")
    A("v_lshrrev_b32 v2, 6, v0")
    A("v_and_b32 v1, 63, v0")
    A("v_readfirstlane_b32 s21, v2")
    A("s_lshr_b32 s22, s21, 1")
    A("s_and_b32 s23, s21, 1")
    A("s_lshl_b32 s24, s2, 1")
    A("s_add_u32 s24, s24, s22")
    A(f"s_mul_i32 s25, s22, {CH_STRIDE}")
    A("v_lshlrev_b32 v3, 4, v1")
    A(f"s_mul_i32 s36, s24, {KR_STRIDE}")
    A("s_lshl_b32 s37, s23, 3")
    A("s_add_u32 s36, s36, s37")
    A(f"s_mul_i32 s38, s23, {4*CP}")
    A("s_add_u32 s38, s38, s25")
    A("s_lshl_b32 s40, s24, 12")
    A("s_lshl_b32 s41, s23, 11")
    A("s_add_u32 s40, s40, s41")
    A("s_add_u32 s42, s25, s41")
    A("s_waitcnt lgkmcnt(0)")
    A("s_lshl_b32 s26, s2, 2")
    A("s_load_dword s27, s[4:5], s26")
    srd_from(A, 12, 10, KR_OFF, KR_SIZE)
    srd_from(A, 16, 10, UT_OFF, UT_SIZE)
    for cc in range(4):
        A(f"s_add_u32 m0, s38, {cc*CP}")
        A(f"s_add_u32 s39, s36, {2*(cc & ~1) + (KR1 if cc & 1 else 0)}")
        for i in range(4):
            A(f"buffer_load_dwordx4 v3, s[12:15], s39 offen offset:{i*1024} lds")
    A(f"s_add_u32 m0, s42, {U_OFF + 480}")
    A("buffer_load_dwordx4 v3, s[16:19], s40 offen lds")
    A("buffer_load_dwordx4 v3, s[16:19], s40 offen offset:1024 lds")
    S.stamp()
    srd_from(A, 28, 10, AT_OFF, AT_SIZE)
    srd_from(A, 32, 10, FL_OFF, FL_SIZE)
    for i in range(4): A(f"v_mov_b32 v{4+i}, 0")
    A("s_cmp_eq_u32 s23, 0")
    A("s_cbranch_scc0 L_conv_z1")
    A(f"s_add_u32 s43, s25, {U_OFF}")
    A("v_add_u32 v8, s43, v3")
    A("v_cmp_gt_u32 vcc, 30, v1")
    A("s_and_saveexec_b64 s[44:45], vcc")
    A("ds_write_b128 v8, v[4:7]")
    A("s_mov_b64 exec, s[44:45]")
    A("s_branch L_conv_z2")
    A.label("L_conv_z1")
    A(f"v_mul_u32_u24 v8, {CP}, v1")
    A("s_add_u32 s43, s25, 4096")
    A("v_add_u32 v8, s43, v8")
    A("v_cmp_gt_u32 vcc, 8, v1")
    A("s_and_saveexec_b64 s[44:45], vcc")
    A("ds_write_b128 v8, v[4:7]")
    A("s_mov_b64 exec, s[44:45]")
    A.label("L_conv_z2")
    A("v_and_b32 v9, 15, v1")
    A("v_lshrrev_b32 v10, 4, v1")
    A("v_lshlrev_b32 v11, 5, v9")
    A("v_lshl_add_u32 v11, v10, 4, v11")
    A("s_lshl_b32 s47, s23, 8")
    A("s_add_u32 s47, s47, s25")
    A(f"s_add_u32 s43, s47, {U_OFF}")
    A("v_add_u32 v11, s43, v11")
    A("v_and_b32 v12, 7, v9")
    A("v_sub_u32 v12, 7, v12")
    A(f"v_mul_u32_u24 v12, {CP}, v12")
    A("v_lshrrev_b32 v13, 3, v9")
    A("v_lshlrev_b32 v13, 4, v13")
    A("v_sub_u32 v13, 16, v13")
    A("v_add_u32 v12, v12, v13")
    A("v_lshl_add_u32 v12, v10, 4, v12")
    A("v_add_u32 v12, s47, v12")
    A("v_lshlrev_b32 v13, 5, v9")
    A("v_lshl_add_u32 v13, v10, 3, v13")
    A("s_add_u32 s43, s42, %d" % (U_OFF + 480))
    A("v_add_u32 v14, s43, v13")
    A("s_lshl_b32 s46, s24, 12")
    A("s_add_u32 s46, s46, s41")
    A("s_lshl_b32 s48, s23, 12")
    A("s_add_u32 s49, s25, s48")
    A("v_add_u32 v8, s49, v3")
    A("s_xor_b32 s48, s48, 4096")
    A("s_add_u32 s49, s25, s48")
    A("v_add_u32 v15, s49, v3")
    ACC = 16
    SA = [48, 112]; SB = [80, 144]
    for i in range(32): A(f"v_mov_b32 v{ACC+i}, 0")
    A("s_lshl_b32 s47, s22, 4")
    A("s_waitcnt lgkmcnt(0)")
    A("s_lshr_b32 s27, s27, s47")
    A("s_lshl_b32 s27, s27, 16")
    A("s_waitcnt vmcnt(0)")
    S.stamp()
    A("s_barrier")
    S.stamp()
    def reads(e):
        a, b = SA[e % 2], SB[e % 2]
        lst = [f"ds_read_b128 v[{b}:{b+3}], v11 offset:{64*e}"]
        for p in range(8): lst.append(f"ds_read_b128 v[{a+4*p}:{a+4*p+3}], v12 offset:{512*(7-p) + 64*e}")
        for q in range(1, 8): lst.append(f"ds_read_b128 v[{b+4*q}:{b+4*q+3}], v11 offset:{512*q + 64*e}")
        return lst
    rd = reads(0)
    for x in rd[:12]: A(x)
    A("s_waitcnt lgkmcnt(3)")
    first = rd[12:]
    for e in range(4):
        a, b = SA[e % 2], SB[e % 2]
        mf = []
        for q in range(8):
            for r in range(q, 8):
                c = ACC + 4 * r
                mf.append((q, f"v_mfma_f32_16x16x32_bf16 v[{c}:{c+3}], v[{a+4*(r-q)}:{a+4*(r-q)+3}], v[{b+4*q}:{b+4*q+3}], v[{c}:{c+3}]"))
        nxt = reads(e + 1) if e < 3 else []
        if e == 0:
            k = 0
            for idx, (q, m) in enumerate(mf):
                if idx < len(first): A(first[idx])
                if idx == 8: A("s_waitcnt lgkmcnt(0)")
                A(m)
                if idx >= 16 and nxt and (idx % 1 == 0): A(nxt.pop(0))
        else:
            A("s_waitcnt lgkmcnt(0)")
            for idx, (q, m) in enumerate(mf):
                A(m)
                if nxt: A(nxt.pop(0))
        assert not nxt
    S.stamp()
    A("s_barrier")
    A("s_cmp_eq_u32 s23, 1")
    A("s_cbranch_scc1 L_conv_x1")
    FIN = 48
    for par in range(2):
        if par == 1: A.label("L_conv_x1")
        keep = 4 * par; send = 4 * (1 - par)
        for k in range(4):
            c = ACC + 4 * (send + k)
            A(f"ds_write_b128 v8, v[{c}:{c+3}] offset:{k*1024}")
        for k in range(4):
            A(f"ds_read_b64 v[{96+2*k}:{97+2*k}], v14 offset:{512*k}")
        A("s_waitcnt lgkmcnt(0)")
        A("s_barrier")
        for k in range(4):
            A(f"ds_read_b128 v[{64+4*k}:{67+4*k}], v15 offset:{k*1024}")
        A("s_waitcnt lgkmcnt(0)")
        for i in range(16):
            A(f"v_add_f32 v{FIN+i}, v{ACC+4*keep+i}, v{64+i}")
        if par == 0: A("s_branch L_conv_x2")
    A.label("L_conv_x2")
    for k in range(4):
        a = FIN + 4 * k
        for h in range(2):
            A(f"v_cvt_pk_bf16_f32 v110, v{a+2*h}, v{a+2*h+1}")
            A(f"v_lshlrev_b32 v111, 16, v{96+2*k+h}")
            A(f"v_and_b32 v112, 0xffff0000, v{96+2*k+h}")
            A("v_mul_f32 v111, s27, v111")
            A("v_mul_f32 v112, s27, v112")
            A("v_cvt_pk_bf16_f32 v111, v111, v112")
            A("v_lshlrev_b32 v112, 16, v110")
            A("v_and_b32 v110, 0xffff0000, v110")
            A("v_lshlrev_b32 v113, 16, v111")
            A("v_and_b32 v111, 0xffff0000, v111")
            A("v_add_f32 v112, v112, v113")
            A("v_add_f32 v110, v110, v111")
            A(f"v_cvt_pk_bf16_f32 v{120+2*k+h}, v112, v110")
        A(f"buffer_store_dwordx2 v[{120+2*k}:{121+2*k}], v13, s[28:31], s46 offen offset:{512*k} sc1")
    S.stamp()
    A("s_waitcnt vmcnt(0)")
    A("s_barrier")
    A("s_cmp_eq_u32 s21, 0")
    A("s_cbranch_scc0 L_conv_end")
    A("s_lshr_b32 s49, s2, 5")
    A("s_lshl_b32 s49, s49, 12")
    A("s_and_b32 s50, s2, 31")
    A("s_lshl_b32 s50, s50, 2")
    A("s_add_u32 s49, s49, s50")
    A("v_lshlrev_b32 v4, 7, v1")
    A("v_mov_b32 v5, 1")
    A("s_mov_b64 exec, 0xffffffff")
    A("buffer_store_dword v5, v4, s[32:35], s49 offen sc1")
    A.label("L_conv_end")
    A("s_mov_b64 exec, -1")
    S.stamp()
    S.flush(10, 21)
    A("s_endpgm")

def k2():
    A = Asm()
    import os
    only = os.environ.get("ONLY2", "")
    A("s_cmp_ge_u32 s2, 512")
    A("s_cbranch_scc1 L_k2_exit")
    A("s_cmp_lt_u32 s2, 256")
    A("s_cbranch_scc1 L_conv")
    if only == "conv": A("s_endpgm")
    gen_gemm2(A)
    if only == "gemm2":
        A.label("L_conv"); A("s_endpgm")
    else:
        gen_conv(A)
    A.label("L_k2_exit")
    A("s_endpgm")
    return A.finish()
```

```python
from gen_common import *
import os

L_UT = 0; L_W2 = 8192; L_PAR = 16384; L_PART = 20480; L_T16 = 28672; T16_STRIDE = 2112; L_K0 = 33024

def gen_prep(A):
    A.label("L_prep")
    S = Stamper(A, 0); S.start()
    A("s_load_dwordx16 s[4:19], s[0:1], 0")
    A("s_load_dwordx16 s[20:35], s[0:1], 64")
    A("s_mov_b32 s36, s2")
    A("v_lshrrev_b32 v2, 6, v0")
    A("v_and_b32 v1, 63, v0")
    A("v_readfirstlane_b32 s37, v2")
    A("s_lshr_b32 s38, s37, 1")
    A("s_and_b32 s39, s37, 1")
    A("s_lshl_b32 s40, s36, 2")
    A("s_lshl_b32 s42, s36, 1")
    A("s_add_u32 s42, s42, s38")
    A("s_lshl_b32 s43, s42, 8")
    A("s_lshl_b32 s60, s39, 7")
    A("s_add_u32 s43, s43, s60")
    A("v_lshl_add_u32 v3, v1, 1, s43")
    A("v_lshlrev_b32 v6, 4, v1")
    A("s_and_b32 s92, s36, 7")
    A("s_lshr_b32 s93, s36, 3")
    A("s_lshl_b32 s78, s92, 8")
    A("s_lshl_b32 s79, s93, 3")
    A("s_add_u32 s78, s78, s79")
    A("s_lshl_b32 s79, s37, 1")
    A("s_add_u32 s78, s78, s79")
    A("s_lshl_b32 s94, s92, 2")
    A("s_lshr_b32 s95, s93, 3")
    A("s_add_u32 s94, s94, s95")
    A("s_and_b32 s95, s93, 7")
    A("s_lshl_b32 s79, s78, 10")
    A("s_waitcnt lgkmcnt(0)")
    A("s_load_dword s41, s[18:19], s40")
    for i, b in enumerate((6, 8, 10, 12, 14, 16)):
        A(f"global_load_ushort v{10+i}, v3, s[{b}:{b+1}]")
    srd_from(A, 64, 4, 0, 2048 * 1024)
    srd_from(A, 68, 26, 0, 1792 * 1024)
    A("buffer_load_dwordx4 v[20:23], v6, s[64:67], s79 offen")
    A("buffer_load_dwordx4 v[24:27], v6, s[64:67], s79 offen offset:1024")
    A("global_load_dwordx4 v[28:31], v6, s[28:29]")
    A("s_lshl_b32 s62, s94, 16")
    A("s_lshl_b32 s63, s95, 7")
    A("s_add_u32 s62, s62, s63")
    A("s_lshl_b32 s63, s37, 14")
    A("s_add_u32 s62, s62, s63")
    A("v_lshrrev_b32 v4, 3, v1")
    A("v_lshlrev_b32 v4, 10, v4")
    A("v_and_b32 v5, 7, v1")
    A("v_lshl_add_u32 v4, v5, 4, v4")
    A("s_lshl_b32 s63, s37, 11")
    A(f"s_add_u32 m0, s63, {L_UT}")
    A("buffer_load_dwordx4 v4, s[64:67], s62 offen lds")
    A("s_add_u32 s62, s62, 8192")
    A(f"s_add_u32 m0, s63, {L_UT + 1024}")
    A("buffer_load_dwordx4 v4, s[64:67], s62 offen lds")
    A("s_lshl_b32 s72, s36, 2")
    A("s_add_u32 s72, s72, s37")
    A("s_cmp_ge_u32 s72, 896")
    A("s_cbranch_scc1 L_prep_now2a")
    A("s_lshr_b32 s73, s72, 4")
    A("s_lshr_b32 s74, s72, 1")
    A("s_and_b32 s74, s74, 7")
    A("s_and_b32 s75, s72, 1")
    A("s_lshl_b32 s76, s73, 15")
    A("s_lshl_b32 s77, s74, 7")
    A("s_add_u32 s76, s76, s77")
    A("s_lshl_b32 s77, s75, 6")
    A("s_add_u32 s76, s76, s77")
    A("v_lshrrev_b32 v5, 2, v1")
    A("v_lshlrev_b32 v5, 10, v5")
    A("v_and_b32 v7, 3, v1")
    A("v_lshl_add_u32 v5, v7, 4, v5")
    A(f"s_add_u32 m0, s63, {L_W2}")
    A("buffer_load_dwordx4 v5, s[68:71], s76 offen lds")
    A("s_add_u32 s76, s76, 16384")
    A(f"s_add_u32 m0, s63, {L_W2 + 1024}")
    A("buffer_load_dwordx4 v5, s[68:71], s76 offen lds")
    A.label("L_prep_now2a")
    if os.environ.get("PFP") == "1":
        srd_from(A, 44, 24, 0, 512 * 3584)
        A("v_mul_u32_u24 v33, 0x4925, v1")
        A("v_lshrrev_b32 v33, 18, v33")
        A("v_mul_u32_u24 v34, 14, v33")
        A("v_sub_u32 v34, v1, v34")
        A("v_mul_u32_u24 v33, 3584, v33")
        A("v_lshl_add_u32 v33, v34, 7, v33")
        A("s_lshl_b32 s60, s93, 2")
        A("s_add_u32 s60, s60, s37")
        A(f"s_mul_i32 s60, s60, {4*3584}")
        A("s_and_b32 s61, s92, 1")
        A("s_mul_i32 s61, s61, 1792")
        A("s_add_u32 s60, s60, s61")
        A("s_mov_b32 exec_hi, 0x00ffffff")
        A("buffer_load_dword v34, v33, s[44:47], s60 offen")
        A("s_mov_b64 exec, -1")
        A("s_xor_b32 s60, s78, 256")
        A("s_lshl_b32 s60, s60, 10")
        A("v_and_b32 v35, 15, v1")
        A("v_lshlrev_b32 v35, 7, v35")
        A("s_mov_b64 exec, 0xffff")
        A("buffer_load_dword v36, v35, s[64:67], s60 offen")
        A("s_mov_b64 exec, -1")
    srd_from(A, 44, 34, KR_OFF, KR_SIZE)
    srd_from(A, 48, 34, UT_OFF, UT_SIZE)
    srd_from(A, 52, 34, W2F_OFF, W2F_SIZE)
    srd_from(A, 56, 34, G_OFF, G_SIZE)
    srd_from(A, 84, 34, FL_OFF, FL_SIZE)
    A(f"s_mul_i32 s80, s38, {T16_STRIDE}")
    A(f"s_add_u32 s80, s80, {L_T16 + 16}")
    A("v_and_b32 v8, 15, v1")
    A("v_cmp_eq_u32 s[88:89], 15, v8")
    A("v_add_u32 v8, 1, v8")
    A("v_cvt_f32_u32 v8, v8")
    A("v_lshrrev_b32 v9, 4, v1")
    A("s_lshl_b32 s60, s37, 10")
    A(f"s_add_u32 s60, s60, {L_PAR}")
    A("v_lshlrev_b32 v9, 6, v9")
    A("v_add_u32 v9, s60, v9")
    A("v_lshl_add_u32 v7, v1, 4, s60")
    ACC = 64
    for i in range(16): A(f"v_mov_b32 v{ACC+i}, 0")
    S.stamp()
    A("s_waitcnt lgkmcnt(0)")
    A("s_lshl_b32 s60, s38, 4")
    A("s_lshr_b32 s41, s41, s60")
    A("s_lshl_b32 s41, s41, 16")
    A("v_mov_b32 v16, s41")
    A(f"v_mul_f32 v16, {LOG2E:#x}, v16")
    A("v_exp_f32 v16, v16")
    A("v_cvt_pk_bf16_f32 v16, v16, v16")
    A("v_lshlrev_b32 v32, 16, v16")
    A("s_waitcnt vmcnt(%d)" % (7 if os.environ.get("PFP") == "1" else 5))
    S.stamp()
    for i in range(6):
        A(f"v_lshlrev_b32 v{10+i}, 16, v{10+i}")
    A("v_mul_f32 v10, v32, v10")
    A("v_mul_f32 v11, v32, v11")
    A("v_mul_f32 v12, v32, v12")
    A("v_mul_f32 v13, v32, v13")
    A(f"v_mul_f32 v16, {LOG2E:#x}, v10")
    A(f"v_mul_f32 v17, {INV2PI:#x}, v11")
    A("v_mul_f32 v18, v14, v12")
    A("v_fma_f32 v18, -v15, v13, v18")
    A("v_mul_f32 v19, v14, v13")
    A("v_fma_f32 v19, v15, v12, v19")
    A("ds_write_b128 v7, v[16:19]")
    PARS = [80, 152]
    def par_reads(s):
        for j in range(4):
            A(f"ds_read_b128 v[{PARS[s%2]+4*j}:{PARS[s%2]+4*j+3}], v9 offset:{s*256 + j*16}")
    A("s_waitcnt lgkmcnt(0)")
    par_reads(0)
    A("v_mov_b32 v10, v18")
    for sh in (1, 2, 4, 8):
        A(f"v_add_f32 v10, v10, v10 row_shr:{sh} row_mask:0xf bank_mask:0xf bound_ctrl:0")
    A("v_add_f32 v10, v10, v10 row_bcast:15 row_mask:0xa bank_mask:0xf")
    A("v_add_f32 v10, v10, v10 row_bcast:31 row_mask:0xc bank_mask:0xf")
    A("s_lshl_b32 s61, s37, 2")
    A(f"s_add_u32 s61, s61, {L_K0}")
    A("v_mov_b32 v11, s61")
    A("v_cmp_eq_u32 vcc, 63, v1")
    A("s_and_saveexec_b64 s[90:91], vcc")
    A("ds_write_b32 v11, v10")
    A("s_mov_b64 exec, s[90:91]")
    F = 96; T = 104; G = 112; BO = 120; AO = 136
    for s in range(4):
        PAR = PARS[s % 2]
        A("s_waitcnt lgkmcnt(0)")
        if s < 3: par_reads(s + 1)
        for j in range(4):
            A(f"v_mul_f32 v{T+2*j}, v{PAR+4*j}, v8")
            A(f"v_mul_f32 v{T+2*j+1}, v{PAR+4*j+1}, v8")
        for j in range(4):
            A(f"v_exp_f32 v{T+2*j}, v{T+2*j}")
            A(f"v_fract_f32 v{T+2*j+1}, v{T+2*j+1}")
        for j in range(4):
            A(f"v_cos_f32 v{F+2*j}, v{T+2*j+1}")
            A(f"v_sin_f32 v{F+2*j+1}, v{T+2*j+1}")
        for j in range(4):
            A(f"v_pk_mul_f32 v[{F+2*j}:{F+2*j+1}], v[{F+2*j}:{F+2*j+1}], v[{T+2*j}:{T+2*j+1}] op_sel:[0,0] op_sel_hi:[1,0]")
        def square():
            for j in range(4):
                f = f"v[{F+2*j}:{F+2*j+1}]"; t = f"v[{T+2*j}:{T+2*j+1}]"
                A(f"v_pk_mul_f32 {t}, {f}, {f} op_sel:[0,0] op_sel_hi:[0,1]")
            for j in range(4):
                f = f"v[{F+2*j}:{F+2*j+1}]"; t = f"v[{T+2*j}:{T+2*j+1}]"
                A(f"v_pk_fma_f32 {f}, {f}, {f}, {t} op_sel:[1,1,0] op_sel_hi:[1,0,1] neg_lo:[1,0,0]")
        for z in range(4):
            if z > 0: square()
            for j in range(4):
                A(f"v_cvt_pk_bf16_f32 v{BO+4*z+j}, v{F+2*j}, v{F+2*j+1}")
        for z in range(4):
            square()
            for j in range(4):
                f = f"v[{F+2*j}:{F+2*j+1}]"; t = f"v[{T+2*j}:{T+2*j+1}]"; c = f"v[{PAR+4*j+2}:{PAR+4*j+3}]"
                A(f"v_pk_mul_f32 {t}, {c}, {f} op_sel:[0,0] op_sel_hi:[0,1]")
            for j in range(4):
                f = f"v[{F+2*j}:{F+2*j+1}]"; t = f"v[{T+2*j}:{T+2*j+1}]"; c = f"v[{PAR+4*j+2}:{PAR+4*j+3}]"
                g = f"v[{G+2*j}:{G+2*j+1}]"
                A(f"v_pk_fma_f32 {g}, {c}, {f}, {t} op_sel:[1,1,0] op_sel_hi:[1,0,1] neg_lo:[1,0,0]")
            if z == 0:
                for j in range(4):
                    A(f"v_cndmask_b32 v{G+2*j}, v{G+2*j}, v{PAR+4*j+2}, s[88:89]")
                    A(f"v_cndmask_b32 v{G+2*j+1}, v{G+2*j+1}, v{PAR+4*j+3}, s[88:89]")
            for j in range(4):
                A(f"v_cvt_pk_bf16_f32 v{AO+4*z+j}, v{G+2*j}, -v{G+2*j+1}")
        for z in range(4):
            A(f"v_mfma_f32_16x16x32_bf16 v[{ACC+4*z}:{ACC+4*z+3}], v[{AO+4*z}:{AO+4*z+3}], v[{BO+4*z}:{BO+4*z+3}], v[{ACC+4*z}:{ACC+4*z+3}]")
    S.stamp()
    PAR = 80; T = 104
    A("s_lshl_b32 s60, s38, 12")
    A(f"s_add_u32 s60, s60, {L_PART}")
    A("v_add_u32 v10, s60, v6")
    A("s_cmp_eq_u32 s39, 0")
    A("s_cbranch_scc1 L_prep_h0a")
    for z in range(4):
        A(f"ds_write_b128 v10, v[{ACC+4*z}:{ACC+4*z+3}] offset:{z*1024}")
    A.label("L_prep_h0a")
    A("s_waitcnt vmcnt(0)")
    A("v_mov_b32 v16, 0")
    A("v_mov_b32 v17, 0")
    for k in range(4):
        A(f"v_dot2_f32_bf16 v16, v{20+k}, v{28+k}, v16")
        A(f"v_dot2_f32_bf16 v17, v{24+k}, v{28+k}, v17")
    for sh in (1, 2, 4, 8):
        for acc in (16, 17):
            A(f"v_add_f32 v{acc}, v{acc}, v{acc} row_shr:{sh} row_mask:0xf bank_mask:0xf bound_ctrl:0")
    for acc in (16, 17): A(f"v_add_f32 v{acc}, v{acc}, v{acc} row_bcast:15 row_mask:0xa bank_mask:0xf")
    for acc in (16, 17): A(f"v_add_f32 v{acc}, v{acc}, v{acc} row_bcast:31 row_mask:0xc bank_mask:0xf")
    for op in ("v_cvt_pk_bf16_f32 v{a}, v{a}, v{a}", "v_lshlrev_b32 v{a}, 16, v{a}", "v_mul_f32 v{a}, %#x, v{a}" % (LOG2E ^ 0x80000000),
               "v_exp_f32 v{a}, v{a}", "v_add_f32 v{a}, 1.0, v{a}", "v_rcp_f32 v{a}, v{a}", "v_cvt_pk_bf16_f32 v{a}, v{a}, v{a}"):
        for acc in (16, 17): A(op.format(a=acc))
    A("v_lshlrev_b32 v12, 16, v16")
    A("v_lshlrev_b32 v14, 16, v17")
    A("v_sub_f32 v13, 1.0, v12")
    A("v_sub_f32 v15, 1.0, v14")
    A("v_cvt_pk_bf16_f32 v13, v13, v13")
    A("v_cvt_pk_bf16_f32 v15, v15, v15")
    A("v_lshlrev_b32 v13, 16, v13")
    A("v_lshlrev_b32 v15, 16, v15")
    A("s_lshl_b32 s79, s78, 3")
    A("v_mov_b32 v9, 0")
    A("v_cmp_eq_u32 vcc, 63, v1")
    A("s_and_saveexec_b64 s[90:91], vcc")
    A(f"buffer_store_dwordx4 v[12:15], v9, s[56:59], s79 offen{STORE_MOD}")
    A("s_mov_b64 exec, s[90:91]")
    A("s_cmp_ge_u32 s72, 896")
    A("s_cbranch_scc1 L_prep_now2b")
    A("v_lshrrev_b32 v12, 2, v1")
    A("v_lshlrev_b32 v12, 6, v12")
    A("v_and_b32 v13, 3, v1")
    A("v_lshl_add_u32 v12, v13, 4, v12")
    A("s_lshl_b32 s63, s37, 11")
    A(f"s_add_u32 s63, s63, {L_W2}")
    A("v_add_u32 v12, s63, v12")
    A("ds_read_b64_tr_b16 v[20:21], v12")
    A("ds_read_b64_tr_b16 v[22:23], v12 offset:1024")
    A("ds_read_b64_tr_b16 v[24:25], v12 offset:8")
    A("ds_read_b64_tr_b16 v[26:27], v12 offset:1032")
    A("s_mul_i32 s76, s74, 56")
    A("s_add_u32 s76, s76, s73")
    A("s_lshl_b32 s76, s76, 2")
    A("s_lshl_b32 s77, s75, 1")
    A("s_add_u32 s76, s76, s77")
    A("s_lshl_b32 s76, s76, 10")
    A("s_waitcnt lgkmcnt(0)")
    A(f"buffer_store_dwordx4 v[20:23], v6, s[52:55], s76 offen{STORE_MOD}")
    A(f"buffer_store_dwordx4 v[24:27], v6, s[52:55], s76 offen offset:1024{STORE_MOD}")
    A.label("L_prep_now2b")
    A("v_lshrrev_b32 v32, 4, v1")
    A("v_lshlrev_b32 v32, 3, v32")
    A("v_bfe_u32 v33, v1, 2, 2")
    A("v_add_u32 v32, v32, v33")
    A("v_lshlrev_b32 v32, 7, v32")
    A("v_and_b32 v33, 3, v1")
    A("v_lshl_add_u32 v32, v33, 3, v32")
    A("s_lshl_b32 s63, s37, 5")
    A(f"s_add_u32 s63, s63, {L_UT}")
    A("v_add_u32 v32, s63, v32")
    A("s_waitcnt lgkmcnt(0)")
    A("s_barrier")
    S.stamp()
    A("ds_read_b64_tr_b16 v[36:37], v32")
    A("ds_read_b64_tr_b16 v[38:39], v32 offset:512")
    A("ds_read_b64_tr_b16 v[40:41], v32 offset:4096")
    A("ds_read_b64_tr_b16 v[42:43], v32 offset:4608")
    A("s_cmp_eq_u32 s39, 0")
    A("s_cbranch_scc0 L_prep_h1b")
    for z in range(4):
        A(f"ds_read_b128 v[{PAR+4*z}:{PAR+4*z+3}], v10 offset:{z*1024}")
    A("s_lshl_b32 s61, s38, 3")
    A(f"s_add_u32 s61, s61, {L_K0}")
    A("v_mov_b32 v11, s61")
    A("ds_read_b64 v[12:13], v11")
    A("v_lshrrev_b32 v14, 4, v1")
    A("v_lshlrev_b32 v14, 2, v14")
    A("v_and_b32 v15, 15, v1")
    A("v_lshlrev_b32 v15, 1, v15")
    A("v_add_u32 v15, s80, v15")
    for r in range(4):
        A(f"v_add_u32 v{16+r}, {r+1}, v14")
        A(f"v_and_b32 v{16+r}, 15, v{16+r}")
        A(f"v_lshl_add_u32 v{16+r}, v{16+r}, 5, v15")
    A("s_waitcnt lgkmcnt(0)")
    for z in range(4):
        for r in range(4):
            A(f"v_add_f32 v{ACC+4*z+r}, v{ACC+4*z+r}, v{PAR+4*z+r}")
        A(f"v_cvt_pk_bf16_f32 v{T+2*z}, v{ACC+4*z}, v{ACC+4*z+1}")
        A(f"v_cvt_pk_bf16_f32 v{T+2*z+1}, v{ACC+4*z+2}, v{ACC+4*z+3}")
        A(f"ds_write_b16 v16, v{T+2*z} offset:{z*512}")
        A(f"ds_write_b16_d16_hi v17, v{T+2*z} offset:{z*512}")
        A(f"ds_write_b16 v18, v{T+2*z+1} offset:{z*512}")
        A(f"ds_write_b16_d16_hi v19, v{T+2*z+1} offset:{z*512}")
    A("v_add_f32 v12, v12, v13")
    A("v_cvt_pk_bf16_f32 v12, v12, v12")
    A("v_lshlrev_b32 v12, 16, v12")
    A("s_sub_u32 s61, s80, 4")
    A("v_mov_b32 v11, s61")
    A("ds_write_b32 v11, v12")
    A.label("L_prep_h1b")
    A("s_lshl_b32 s61, s95, 18")
    A("s_lshl_b32 s62, s37, 16")
    A("s_add_u32 s61, s61, s62")
    A("s_lshl_b32 s60, s94, 7")
    A("s_add_u32 s61, s61, s60")
    A("v_and_b32 v13, 15, v1")
    A("v_lshlrev_b32 v13, 12, v13")
    A("v_lshrrev_b32 v14, 4, v1")
    A("v_lshl_add_u32 v13, v14, 4, v13")
    A("s_waitcnt lgkmcnt(0)")
    A(f"buffer_store_dwordx4 v[36:39], v13, s[48:51], s61 offen{STORE_MOD}")
    A(f"buffer_store_dwordx4 v[40:43], v13, s[48:51], s61 offen offset:64{STORE_MOD}")
    A(f"s_mul_i32 s60, s42, {KR_STRIDE}")
    A("s_lshl_b32 s61, s39, 11")
    A("s_sub_u32 s62, s60, s61")
    A(f"s_add_u32 s62, s62, {255*16 - 1024}")
    A("v_sub_u32 v12, 0, v6")
    A("v_add_u32 v12, s62, v12")
    A(f"s_movk_i32 s63, {KR1}")
    A("s_barrier")
    S.stamp()
    def lo(d, l, h): A(f"v_lshl_or_b32 v{d}, v{h}, 16, v{l}")
    def stores(R, off):
        A(f"buffer_store_dwordx4 v[{R}:{R+3}], v12, s[44:47], 0 offen offset:{off}{STORE_MOD}")
        A(f"buffer_store_dwordx4 v[{R+4}:{R+7}], v12, s[44:47], s63 offen offset:{off}{STORE_MOD}")
    A("s_cmp_eq_u32 s39, 0")
    A("s_cbranch_scc1 L_prep_e0")
    A(f"s_add_u32 s60, s80, {1536 + 254}")
    A("v_lshl_add_u32 v14, v1, 1, s60")
    A("v_and_b32 v15, 1, v1")
    A("v_lshl_add_u32 v15, v15, 1, v14")
    for n2 in range(2):
        A(f"ds_read_u16 v{80+3*n2}, v14 offset:{128*n2}")
        A(f"ds_read_u16 v{81+3*n2}, v14 offset:{128*n2+2}")
        A(f"ds_read_u16 v{82+3*n2}, v15 offset:{128*n2}")
    for i in range(4): A(f"v_mov_b32 v{104+i}, 0")
    A("s_lshl_b32 s61, s36, 7")
    A("s_waitcnt lgkmcnt(0)")
    for n2 in range(2):
        a, c, t = 80+3*n2, 81+3*n2, 82+3*n2; R = 88 + 8*n2
        lo(R, c, c); lo(R+1, c, t); lo(R+2, a, a); lo(R+3, a, a)
        lo(R+4, c, c); lo(R+5, t, a); lo(R+6, a, a); lo(R+7, a, a)
        stores(R, 1024 if n2 == 0 else 0)
    A("s_cmp_eq_u32 s38, 0")
    A("s_cbranch_scc0 L_prep_end")
    A("s_mov_b64 exec, 0xff")
    A(f"buffer_store_dwordx4 v[104:107], v6, s[84:87], s61 offen{STORE_MOD}")
    A("s_branch L_prep_end")
    A.label("L_prep_e0")
    A(f"s_add_u32 s60, s80, {1024 + 254}")
    A("v_lshl_add_u32 v14, v1, 2, s60")
    for i in range(3): A(f"ds_read_u16 v{80+i}, v14 offset:{2*i}")
    A("s_sub_u32 s60, s80, 4")
    A("v_lshl_add_u32 v15, v1, 4, s60")
    A(f"s_add_u32 s60, s80, 510")
    A("v_lshl_add_u32 v16, v1, 3, s60")
    A(f"s_add_u32 s60, s80, 508")
    A("v_mov_b32 v17, s60")
    W = 108
    A("s_mov_b64 exec, 0xffffffff")
    for i in range(9): A(f"ds_read_u16 v{W+i}, v15 offset:{2*i}")
    A("s_mov_b32 exec_lo, 0")
    A("s_mov_b32 exec_hi, -1")
    for i, o in enumerate((0, 0, 0, 2, 4, 4, 4, 6, 8)):
        if i > 0: A(f"ds_read_u16 v{W+i}, v16 offset:{o}")
    A("s_mov_b32 exec_hi, 0xfffffffe")
    A(f"ds_read_u16 v{W}, v16")
    A("s_mov_b32 exec_hi, 1")
    A(f"ds_read_u16 v{W}, v17")
    A("s_mov_b64 exec, -1")
    for i in range(4): A(f"v_mov_b32 v{104+i}, 0")
    A("v_lshrrev_b32 v18, 2, v1")
    A(f"v_mul_u32_u24 v18, {KR1}, v18")
    A("v_and_b32 v19, 3, v1")
    A("v_lshl_add_u32 v18, v19, 4, v18")
    A(f"s_mul_i32 s60, s42, {KR_STRIDE}")
    A("s_add_u32 s60, s60, 4096")
    A("s_waitcnt lgkmcnt(0)")
    p0, p1, p2 = 80, 81, 82; R = 88
    lo(R, p2, p2); lo(R+1, p1, p1); lo(R+2, p1, p0); lo(R+3, p0, p0)
    lo(R+4, p2, p1); lo(R+5, p1, p1); lo(R+6, p0, p0); lo(R+7, p0, p0)
    stores(R, 0)
    R2 = 120
    for k in range(4): lo(R2 + k, W + 8 - 2*k, W + 7 - 2*k)
    for k in range(4): lo(R2 + 4 + k, W + 7 - 2*k, W + 6 - 2*k)
    stores(R2, 1024)
    A("s_mov_b64 exec, 0xff")
    A(f"buffer_store_dwordx4 v[104:107], v18, s[44:47], s60 offen{STORE_MOD}")
    A.label("L_prep_end")
    A("s_mov_b64 exec, -1")
    S.stamp()
    S.flush(34, 37)
    A("s_endpgm")
```

```python
import sys
from gen_common import *
from gen_prep import gen_prep
from gen_gemm1 import gen_gemm1

def k1():
    A = Asm()
    A("s_cmp_ge_u32 s2, 512")
    A("s_cbranch_scc1 L_k1_exit")
    A("s_cmp_lt_u32 s2, 256")
    A("s_cbranch_scc1 L_prep")
    import os
    only = os.environ.get("ONLY", "")
    if only == "prep": A("s_endpgm")
    gen_gemm1(A)
    if only == "gemm1":
        A.label("L_prep"); A("s_endpgm")
    else:
        gen_prep(A)
    A.label("L_k1_exit")
    A("s_endpgm")
    return A.finish()

def main(path, with_k2=True):
    hdr = open("cdna_kernels/" + NAME + ".s.ref").read().split("\n")
    top = [l for l in hdr if l.startswith(";") and "@launch" not in l and "Override launch" not in l and "grid=ceil" not in l]
    top = top[:[i for i, l in enumerate(top) if "offset 120" in l][0] + 1]
    out = "\n".join(top) + "\n"
    k1n = "ssm_ffn_stage1_kernel"; k2n = NAME + "_kernel"
    out += f"; @launch kernel={k1n} grid=(512,1,1) block=(256,1,1) lds=81920\n"
    if with_k2:
        out += f"; @launch kernel={k2n} grid=(512,1,1) block=(256,1,1) lds=75776\n"
    out += '.amdgcn_target "amdgcn-amd-amdhsa--gfx950"\n.text\n'
    out += kernel_header(k1n) + k1() + "\n"
    if with_k2:
        from gen_k2 import k2
        out += kernel_header(k2n) + k2() + "\n"
    out += kernel_desc(k1n, 256, 102)
    if with_k2: out += kernel_desc(k2n, 256, 102)
    open(path, "w").write(out)

if __name__ == "__main__":
    main(sys.argv[1], with_k2=(len(sys.argv) < 3 or sys.argv[2] != "nok2"))
```

```python
from gen_common import *
import os

XS = 16384; NX = 3
WB = NX * XS; WS = 8192; NW = 4
NCH = 16

def gen_gemm1(A):
    A.label("L_gemm1")
    if os.environ.get("FUSED") != "1":
        A("s_cmp_ge_u32 s2, 480")
        A("s_cbranch_scc1 L_k1_exit")
    S = Stamper(A, 0, 210); S.start()
    if os.environ.get("G1PRIO"): A("s_setprio " + os.environ["G1PRIO"])
    A("s_load_dwordx2 s[4:5], s[0:1], 0")
    A("s_load_dwordx2 s[6:7], s[0:1], 80")
    A("s_load_dwordx2 s[8:9], s[0:1], 120")
    A("v_lshrrev_b32 v2, 6, v0")
    A("v_and_b32 v1, 63, v0")
    A("v_readfirstlane_b32 s20, v2")
    A("s_and_b32 s21, s2, 7")
    A("s_sub_u32 s22, s2, 256")
    A("s_lshr_b32 s22, s22, 3")
    A("s_mul_i32 s25, s22, 37")
    A("s_lshr_b32 s25, s25, 8")
    A("s_mul_i32 s26, s25, 7")
    A("s_sub_u32 s26, s22, s26")
    A("s_lshr_b32 s23, s21, 1")
    A("s_lshl_b32 s23, s23, 2")
    A("s_add_u32 s23, s23, s25")
    A("s_and_b32 s24, s21, 1")
    A("s_mul_i32 s24, s24, 7")
    A("s_add_u32 s24, s24, s26")
    A("v_lshrrev_b32 v3, 3, v1")
    A("v_and_b32 v4, 7, v1")
    A("v_lshrrev_b32 v5, 4, v1")
    A("v_xor_b32 v4, v4, v5")
    A("v_lshlrev_b32 v3, 10, v3")
    A("v_lshl_add_u32 v200, v4, 4, v3")
    A("v_xor_b32 v201, 64, v200")
    A(f"v_add_u32 v201, {7168}, v201")
    A(f"v_add_u32 v202, {2*7168}, v200")
    A(f"v_add_u32 v203, {2*7168}, v201")
    A("v_lshrrev_b32 v3, 4, v1")
    A("v_and_b32 v4, 15, v1")
    A("v_lshlrev_b32 v5, 1, v3")
    A("v_xor_b32 v4, v4, v5")
    A("s_and_b32 s27, s20, 1")
    A("s_lshl_b32 s27, s27, 3")
    A("v_xor_b32 v4, s27, v4")
    A("v_mul_u32_u24 v3, 3584, v3")
    A("v_lshl_add_u32 v11, v4, 4, v3")
    A(f"v_add_u32 v9, {4*3584 - 1024}, v11")
    A("s_lshl_b32 s32, s23, 17")
    A("s_lshl_b32 s33, s20, 15")
    A("s_add_u32 s32, s32, s33")
    A("s_lshl_b32 s34, s24, 8")
    A(f"s_mul_i32 s35, s20, {8*3584}")
    A("s_add_u32 s34, s34, s35")
    A("s_lshl_b32 s36, s20, 12")
    A("s_lshl_b32 s35, s20, 11")
    A("s_lshl_b32 s44, s22, 2")
    A("s_add_u32 s44, s44, s20")
    A("s_lshl_b32 s44, s44, 6")
    A("v_add_u32 v3, s44, v1")
    A("v_lshlrev_b32 v204, 7, v3")
    A("v_mul_u32_u24 v4, 74899, v3")
    A("v_lshrrev_b32 v4, 20, v4")
    A("v_mul_u32_u24 v5, 14, v4")
    A("v_sub_u32 v5, v3, v5")
    A("v_mul_u32_u24 v4, 3584, v4")
    A("v_lshl_add_u32 v205, v5, 7, v4")
    A("s_and_b32 s45, s21, 1")
    A("s_mul_i32 s45, s45, 1792")
    A("s_lshr_b32 s46, s21, 1")
    A("s_lshl_b32 s46, s46, 19")
    A("s_waitcnt lgkmcnt(0)")
    srd_from(A, 12, 4, 0, 2048 * 1024)
    srd_from(A, 16, 6, 0, 512 * 3584)
    seq = []
    def issue_x(X):
        seq.append((("X", X), 4))
        return [f"s_add_u32 m0, s36, {(X % NX) * XS}"] + [f"buffer_load_dwordx4 v{200+i}, s[12:15], s32 offen offset:{1024*i} lds" for i in range(4)] + ["s_add_u32 s32, s32, 128"]
    def issue_w(c):
        seq.append((("W", c), 2))
        return [f"s_add_u32 m0, s35, {WB + (c % NW) * WS}",
                "buffer_load_dwordx4 v11, s[16:19], s34 offen lds",
                "buffer_load_dwordx4 v9, s[16:19], s34 offen offset:1024 lds",
                f"s_add_u32 s34, s34, {32*3584}"]
    def allowed(c):
        last = max(i for i, (t, n) in enumerate(seq) if t in (("X", c >> 1), ("W", c)))
        return sum(n for (t, n) in seq[last + 1:])
    FINE = os.environ.get("FINE") == "1"
    if FINE: S.stamp()
    for x in issue_x(0): A(x)
    if FINE: S.stamp()
    for x in issue_w(0) + issue_w(1): A(x)
    if FINE: S.stamp()
    if os.environ.get("NOPF1") != "1":
        A("s_add_u32 s48, s4, s46")
        A("s_addc_u32 s49, s5, 0")
        A("s_mov_b32 s50, 0x80000")
        A(f"s_mov_b32 s51, {SRD3:#x}")
        A("buffer_load_dword v206, v205, s[16:19], s45 offen")
        A("buffer_load_dword v207, v204, s[48:51], 0 offen")
        seq.append((("P", 0), 2))
    if FINE: S.stamp()
    for x in issue_x(1): A(x)
    if FINE: S.stamp()
    for x in issue_w(2) + issue_w(3) + issue_x(2): A(x)
    S.stamp()
    srd_from(A, 28, 8, HF_OFF, HF_SIZE)
    A("s_lshr_b32 s37, s20, 1")
    A("s_and_b32 s38, s20, 1")
    A("v_and_b32 v3, 15, v1")
    A("v_lshrrev_b32 v4, 1, v3")
    A("v_lshrrev_b32 v5, 4, v1")
    A("v_xor_b32 v4, v4, v5")
    A("v_lshlrev_b32 v3, 7, v3")
    A("v_lshl_add_u32 v12, v4, 4, v3")
    A("s_lshl_b32 s39, s37, 13")
    A("v_add_u32 v12, s39, v12")
    A("v_xor_b32 v13, 64, v12")
    A("v_bfe_u32 v4, v1, 2, 2")
    A("v_and_b32 v3, 1, v5")
    A("v_lshlrev_b32 v3, 2, v3")
    A("s_lshl_b32 s39, s38, 2")
    A("v_xor_b32 v3, s39, v3")
    A("v_xor_b32 v3, v3, v4")
    A("v_lshlrev_b32 v6, 11, v5")
    A("v_lshl_add_u32 v6, v4, 8, v6")
    A("v_and_b32 v7, 3, v1")
    A("v_lshl_add_u32 v6, v7, 3, v6")
    A(f"v_add_u32 v6, {WB}, v6")
    for p in range(4):
        A(f"v_xor_b32 v7, {p}, v3")
        A(f"v_lshl_add_u32 v{14+p}, v7, 5, v6")
    ACC = 24
    FR = [88, 120]
    for i in range(64): A(f"v_mov_b32 v{ACC+i}, 0")
    def reads(ch):
        f = FR[ch % 2]
        xo = ((ch >> 1) % NX) * XS; wo = (ch % NW) * WS
        xs = [f"ds_read_b128 v[{f+4*tt}:{f+4*tt+3}], v{12 + (ch & 1)} offset:{xo + tt*2048}" for tt in range(4)]
        ws = []
        for p in range(4):
            ws.append(f"ds_read_b64_tr_b16 v[{f+16+4*p}:{f+17+4*p}], v{14+p} offset:{wo}")
            ws.append(f"ds_read_b64_tr_b16 v[{f+18+4*p}:{f+19+4*p}], v{14+p} offset:{wo+1024}")
        return xs + ws
    def mfmas(ch):
        f = FR[ch % 2]; lst = []
        for p in range(4):
            for tt in range(4):
                a = ACC + (tt * 4 + p) * 4
                lst.append(f"v_mfma_f32_16x16x32_bf16 v[{a}:{a+3}], v[{f+16+4*p}:{f+19+4*p}], v[{f+4*tt}:{f+4*tt+3}], v[{a}:{a+3}]")
        return lst
    A(f"s_waitcnt vmcnt({allowed(0)})")
    A("s_barrier")
    for x in reads(0): A(x)
    S.stamp()
    for j in range(NCH - 1):
        A(f"s_waitcnt vmcnt({allowed(j + 1)}) lgkmcnt(0)")
        A("s_barrier")
        iss = []
        if j + NW < NCH: iss += issue_w(j + NW)
        if j % 2 == 1 and (j >> 1) + NX < NCH // 2: iss += issue_x((j >> 1) + NX)
        rd = reads(j + 1); mf = mfmas(j)
        other = iss[:4] + rd[:6] + iss[4:] + rd[6:]
        for m in mf:
            A(m)
            for _ in range(2):
                if other: A(other.pop(0))
        assert not other
        if j == 7: S.stamp()
    S.stamp()
    A("s_waitcnt lgkmcnt(0)")
    for m in mfmas(NCH - 1): A(m)
    S.stamp()
    A("v_lshlrev_b32 v14, 4, v1")
    A("s_lshl_b32 s40, s23, 1")
    A("s_add_u32 s40, s40, s37")
    A("s_mul_i32 s41, s40, 56")
    A("s_lshl_b32 s42, s24, 2")
    A("s_add_u32 s41, s41, s42")
    A("s_lshl_b32 s42, s38, 1")
    A("s_add_u32 s41, s41, s42")
    A("s_lshl_b32 s41, s41, 12")
    A("s_add_u32 s43, s41, 4096")
    NL2E = LOG2E ^ 0x80000000
    A(f"s_mov_b32 s46, {NL2E:#x}")
    A("s_mov_b32 s47, s46")
    A("s_mov_b32 s48, 1.0")
    A("s_mov_b32 s49, 1.0")
    P = 88
    def silu_pack(a, dst, t):
        for h in range(2):
            A(f"v_pk_mul_f32 v[{t+2*h}:{t+1+2*h}], v[{a+2*h}:{a+2*h+1}], s[46:47]")
        for k in range(4): A(f"v_exp_f32 v{t+k}, v{t+k}")
        for h in range(2):
            A(f"v_pk_add_f32 v[{t+2*h}:{t+1+2*h}], v[{t+2*h}:{t+1+2*h}], s[48:49]")
        for k in range(4): A(f"v_rcp_f32 v{t+k}, v{t+k}")
        for h in range(2):
            A(f"v_pk_mul_f32 v[{a+2*h}:{a+2*h+1}], v[{a+2*h}:{a+2*h+1}], v[{t+2*h}:{t+1+2*h}]")
        for h in range(2):
            A(f"v_cvt_pk_bf16_f32 v{dst+h}, v{a+2*h}, v{a+2*h+1}")
    n = 0
    for kk in range(2):
        for tt in range(4):
            d = P + (n % 8) * 4; n += 1
            for i in range(2):
                silu_pack(ACC + (tt * 4 + 2 * kk + i) * 4, d + 2 * i, 124 + 4 * i)
            A(f"buffer_store_dwordx4 v[{d}:{d+3}], v14, s[28:31], s{41 if kk == 0 else 43} offen offset:{tt*1024}{STORE_MOD}")
    S.stamp()
    if STAMPS:
        A("s_waitcnt vmcnt(0)"); S.stamp(); S.flush(8, 20)
    if os.environ.get("FUSED") == "1":
        from gen_fused import g1_tail
        g1_tail(A)
    else:
        A("s_endpgm")
```

```python
from gen_common import *
import os

CH_STRIDE = 37888; CP = 4160; U_OFF = 33280
RED = 0; AT_L = 65536; AT_S = 144

def gen_gemm2(A):
    A.label("L_gemm2")
    S = Stamper(A, 1, 60); S.start()
    A("s_load_dwordx4 s[4:7], s[0:1], 104")
    A("s_load_dwordx2 s[8:9], s[0:1], 120")
    A("v_lshrrev_b32 v2, 6, v0")
    A("v_and_b32 v1, 63, v0")
    A("v_readfirstlane_b32 s20, v2")
    A("s_sub_u32 s47, s2, 256")
    A("s_and_b32 s21, s47, 7")
    A("s_lshr_b32 s22, s47, 3")
    A("s_lshl_b32 s23, s21, 2")
    A("s_lshr_b32 s24, s22, 3")
    A("s_add_u32 s23, s23, s24")
    A("s_and_b32 s24, s22, 7")
    A("v_lshlrev_b32 v3, 4, v1")
    A(f"s_mul_i32 s25, s20, {14*4096}")
    A("v_add_u32 v4, s25, v3")
    A(f"s_mul_i32 s26, s23, {56*4096}")
    A(f"s_mul_i32 s27, s24, {56*4096}")
    A("s_waitcnt lgkmcnt(0)")
    A("s_add_u32 s12, s8, s26")
    A("s_addc_u32 s13, s9, 0")
    A(f"s_mov_b32 s14, {56*4096}")
    A(f"s_mov_b32 s15, {SRD3:#x}")
    A(f"s_add_u32 s16, s8, {W2F_OFF:#x}")
    A("s_addc_u32 s17, s9, 0")
    A("s_add_u32 s16, s16, s27")
    A("s_addc_u32 s17, s17, 0")
    A(f"s_mov_b32 s18, {56*4096}")
    A(f"s_mov_b32 s19, {SRD3:#x}")
    SET = [64, 96, 128, 160]; ACC = 192
    def issue(i):
        s = SET[i % 4]
        A(f"s_mov_b32 s40, {i*4096}")
        for k in range(4):
            A(f"buffer_load_dwordx4 v[{s+4*k}:{s+4*k+3}], v4, s[12:15], s40 offen offset:{k*1024}")
            A(f"buffer_load_dwordx4 v[{s+16+4*k}:{s+16+4*k+3}], v4, s[16:19], s40 offen offset:{k*1024}")
    issue(0)
    NPF = 0
    if os.environ.get("NOPF2") != "1":
        NPF = 2
        A("s_mov_b32 s56, s8")
        A("s_mov_b32 s57, s9")
        A(f"s_mov_b32 s58, {W2F_OFF + W2F_SIZE:#x}")
        A(f"s_mov_b32 s59, {SRD3:#x}")
        A("s_lshl_b32 s60, s22, 6")
        A("s_add_u32 s60, s60, 1152")
        A(f"s_mul_i32 s61, s21, {4*229376}")
        A(f"s_mul_i32 s62, s20, {14*4096}")
        A(f"s_mov_b32 s63, {W2F_OFF - 4*229376:#x}")
        for k in range(2):
            A(f"s_add_u32 s64, s60, {2048*k}")
            A("v_add_u32 v40, s64, v1")
            A("v_mul_u32_u24 v41, 43691, v40")
            A("v_lshrrev_b32 v41, 24, v41")
            A("v_mul_u32_u24 v42, 384, v41")
            A("v_sub_u32 v42, v40, v42")
            A("v_lshrrev_b32 v43, 5, v42")
            A("v_and_b32 v42, 31, v42")
            A("v_lshlrev_b32 v42, 7, v42")
            A("v_lshl_add_u32 v42, v41, 12, v42")
            A("v_mul_u32_u24 v44, 229376, v43")
            A("v_mov_b32 v45, s61")
            A("v_mov_b32 v46, s63")
            A("v_cmp_gt_u32 vcc, 4, v43")
            A("v_cndmask_b32 v45, v46, v45, vcc")
            A("v_add3_u32 v42, v42, v44, v45")
            A(f"buffer_load_dword v{47+k}, v42, s[56:59], s62 offen")
    issue(1); issue(2)
    S.stamp()
    if os.environ.get("G2PRIO", "1") != "0": A("s_setprio " + os.environ.get("G2PRIO", "1"))
    srd_from(A, 28, 8, AT_OFF, AT_SIZE)
    srd_from(A, 32, 8, G_OFF, G_SIZE)
    srd_from(A, 36, 4, 0, 2048 * 1024)
    srd_from(A, 44, 8, FL_OFF, FL_SIZE)
    for i in range(64): A(f"v_mov_b32 v{ACC+i}, 0")
    A("v_and_b32 v11, 31, v1")
    A("v_lshlrev_b32 v11, 2, v11")
    A("s_lshl_b32 s43, s24, 5")
    A("s_add_u32 s43, s43, s23")
    A("s_lshl_b32 s43, s43, 7")
    A("v_and_b32 v5, 15, v1")
    A("s_lshl_b32 s41, s23, 6")
    A("s_lshl_b32 s42, s20, 4")
    A("s_add_u32 s41, s41, s42")
    A("v_add_u32 v6, s41, v5")
    A("v_lshlrev_b32 v7, 3, v6")
    A("v_lshrrev_b32 v13, 3, v1")
    A("v_and_b32 v14, 7, v1")
    A("v_lshlrev_b32 v15, 12, v13")
    A("v_lshl_add_u32 v15, v14, 4, v15")
    A("s_lshl_b32 s50, s24, 18")
    A("s_lshl_b32 s51, s20, 16")
    A("s_add_u32 s50, s50, s51")
    A("s_lshl_b32 s51, s23, 7")
    A("s_add_u32 s50, s50, s51")
    A("s_add_u32 s52, s50, 0x8000")
    def a_loads():
        A("buffer_load_dwordx4 v[16:19], v15, s[28:31], s50 offen sc1")
        A("buffer_load_dwordx4 v[20:23], v15, s[28:31], s52 offen sc1")
    for i in range(14):
        if i + 3 < 14: issue(i + 3)
        if i == 7: A("buffer_load_dword v12, v11, s[44:47], s43 offen sc1")
        left = 8 * (min(13, i + 3) - i)
        if 7 <= i <= 10: left += 1
        if i == 0: left += NPF
        if i >= 12: left += 3
        if i in (1, 7): S.stamp()
        A(f"s_waitcnt vmcnt({left})")
        if i == 11:
            A("v_cmp_eq_u32 vcc, 1, v12")
            A("s_cmp_eq_u64 vcc, -1")
            A("s_cselect_b32 s53, 1, 0")
            if os.environ.get("ONLY2") == "gemm2": A("s_mov_b32 s53, 1")
            a_loads()
            A("buffer_load_dwordx2 v[8:9], v7, s[32:35], 0 offen")
        s = SET[i % 4]
        for dt in range(4 if not os.environ.get("NOMFMA") else 0):
            for tt in range(4):
                a = ACC + (dt * 4 + tt) * 4
                A(f"v_mfma_f32_16x16x32_bf16 v[{a}:{a+3}], v[{s+16+4*dt}:{s+16+4*dt+3}], v[{s+4*tt}:{s+4*tt+3}], v[{a}:{a+3}]")
    S.stamp()
    A("s_lshl_b32 s42, s20, 12")
    A("v_add_u32 v10, s42, v3")
    for tt in range(4):
        for dt in range(4):
            a = ACC + (dt * 4 + tt) * 4
            A(f"ds_write_b128 v10, v[{a}:{a+3}] offset:{RED + tt*16384 + dt*1024}")
    A("s_cmp_eq_u32 s53, 1")
    A("s_cbranch_scc1 L_g2_go")
    A("s_mov_b32 s48, 0")
    A.label("L_g2_poll")
    A("buffer_load_dword v12, v11, s[44:47], s43 offen sc1")
    A("s_waitcnt vmcnt(0)")
    A("v_cmp_eq_u32 vcc, 1, v12")
    A("s_add_u32 s48, s48, 1")
    A("s_cmp_eq_u64 vcc, -1")
    A("s_cbranch_scc1 L_g2_got")
    A("s_cmp_lt_u32 s48, 0x40000")
    A("s_sleep 4")
    A("s_cbranch_scc1 L_g2_poll")
    A.label("L_g2_got")
    a_loads()
    A.label("L_g2_go")
    S.stamp()
    A(f"v_mul_u32_u24 v13, {AT_S}, v13")
    A("v_lshl_add_u32 v13, v14, 4, v13")
    A(f"s_mul_i32 s51, s20, {16*AT_S}")
    A(f"s_add_u32 s51, s51, {AT_L}")
    A("v_add_u32 v13, s51, v13")
    A("s_waitcnt vmcnt(0)")
    A("ds_write_b128 v13, v[16:19]")
    A(f"ds_write_b128 v13, v[20:23] offset:{8*AT_S}")
    A("s_waitcnt lgkmcnt(0)")
    A("s_barrier")
    A("s_lshl_b32 s42, s20, 14")
    A("v_add_u32 v10, s42, v3")
    S0 = 64
    for src in range(4):
        for dt in range(4):
            r = S0 + (src * 4 + dt) * 4
            A(f"ds_read_b128 v[{r}:{r+3}], v10 offset:{RED + src*4096 + dt*1024}")
    A("v_lshrrev_b32 v13, 4, v1")
    A("v_lshlrev_b32 v13, 3, v13")
    A("v_bfe_u32 v14, v1, 2, 2")
    A("v_add_u32 v13, v13, v14")
    A(f"v_mul_u32_u24 v13, {AT_S}, v13")
    A("v_and_b32 v14, 3, v1")
    A("v_lshl_add_u32 v13, v14, 3, v13")
    A("s_lshl_b32 s51, s20, 5")
    A(f"s_add_u32 s51, s51, {AT_L}")
    A("v_add_u32 v13, s51, v13")
    for dt in range(4):
        A(f"ds_read_b64_tr_b16 v[{24+2*dt}:{25+2*dt}], v13 offset:{(32*(dt>>1) + 4*(dt&1))*AT_S}")
    A("s_waitcnt lgkmcnt(0)")
    B = 128
    for dt in range(4):
        for r in range(4):
            x = [S0 + (src * 4 + dt) * 4 + r for src in range(4)]
            A(f"v_add_f32 v{x[0]}, v{x[0]}, v{x[1]}")
            A(f"v_add_f32 v{x[2]}, v{x[2]}, v{x[3]}")
            A(f"v_add_f32 v{B+dt*4+r}, v{x[0]}, v{x[2]}")
    O = 160
    for dt in range(4):
        for h in range(2):
            b0, b1 = B + dt * 4 + 2 * h, B + dt * 4 + 2 * h + 1
            ar = 24 + 2 * dt + h
            A(f"v_cvt_pk_bf16_f32 v32, v{b0}, v{b1}")
            A("v_lshlrev_b32 v33, 16, v32")
            A("v_and_b32 v34, 0xffff0000, v32")
            A("v_mul_f32 v33, v9, v33")
            A("v_mul_f32 v34, v9, v34")
            A("v_cvt_pk_bf16_f32 v32, v33, v34")
            A(f"v_lshlrev_b32 v35, 16, v{ar}")
            A(f"v_and_b32 v36, 0xffff0000, v{ar}")
            A("v_mul_f32 v35, v8, v35")
            A("v_mul_f32 v36, v8, v36")
            A("v_cvt_pk_bf16_f32 v37, v35, v36")
            A("v_lshlrev_b32 v33, 16, v32")
            A("v_and_b32 v34, 0xffff0000, v32")
            A("v_lshlrev_b32 v35, 16, v37")
            A("v_and_b32 v36, 0xffff0000, v37")
            A("v_add_f32 v33, v33, v35")
            A("v_add_f32 v34, v34, v36")
            A(f"v_cvt_pk_bf16_f32 v{O+dt*2+h}, v33, v34")
    A("v_lshlrev_b32 v6, 10, v6")
    A("v_lshrrev_b32 v13, 4, v1")
    A("v_lshl_add_u32 v6, v13, 4, v6")
    A("s_lshl_b32 s51, s24, 7")
    A(f"buffer_store_dwordx4 v[{O}:{O+3}], v6, s[36:39], s51 offen")
    A(f"buffer_store_dwordx4 v[{O+4}:{O+7}], v6, s[36:39], s51 offen offset:64")
    S.stamp()
    S.flush(8, 20)
    A("s_endpgm")

def gen_conv(A):
    A.label("L_conv")
    S = Stamper(A, 1); S.start()
    A("s_setprio " + os.environ.get("CVPRIO", "2"))
    A("s_load_dwordx2 s[4:5], s[0:1], 64")
    A("s_load_dwordx2 s[10:11], s[0:1], 120")
    A("v_lshrrev_b32 v2, 6, v0")
    A("v_and_b32 v1, 63, v0")
    A("v_readfirstlane_b32 s21, v2")
    A("s_lshr_b32 s22, s21, 1")
    A("s_and_b32 s23, s21, 1")
    A("s_lshl_b32 s24, s2, 1")
    A("s_add_u32 s24, s24, s22")
    A(f"s_mul_i32 s25, s22, {CH_STRIDE}")
    A("v_lshlrev_b32 v3, 4, v1")
    A(f"s_mul_i32 s36, s24, {KR_STRIDE}")
    A("s_lshl_b32 s37, s23, 3")
    A("s_add_u32 s36, s36, s37")
    A(f"s_mul_i32 s38, s23, {4*CP}")
    A("s_add_u32 s38, s38, s25")
    A("s_lshl_b32 s40, s24, 12")
    A("s_lshl_b32 s41, s23, 11")
    A("s_add_u32 s40, s40, s41")
    A("s_add_u32 s42, s25, s41")
    A("s_waitcnt lgkmcnt(0)")
    A("s_lshl_b32 s26, s2, 2")
    A("s_load_dword s27, s[4:5], s26")
    srd_from(A, 12, 10, KR_OFF, KR_SIZE)
    srd_from(A, 16, 10, UT_OFF, UT_SIZE)
    for cc in range(4):
        A(f"s_add_u32 m0, s38, {cc*CP}")
        A(f"s_add_u32 s39, s36, {2*(cc & ~1) + (KR1 if cc & 1 else 0)}")
        for i in range(4):
            A(f"buffer_load_dwordx4 v3, s[12:15], s39 offen offset:{i*1024} lds")
    if os.environ.get("FUSED") == "1":
        from gen_fused import conv_wait
        conv_wait(A)
    A(f"s_add_u32 m0, s42, {U_OFF + 480}")
    A("buffer_load_dwordx4 v3, s[16:19], s40 offen lds")
    A("buffer_load_dwordx4 v3, s[16:19], s40 offen offset:1024 lds")
    if os.environ.get("FUSED") == "1":
        from gen_fused import conv_wait2
        conv_wait2(A)
    S.stamp()
    srd_from(A, 28, 10, AT_OFF, AT_SIZE)
    srd_from(A, 32, 10, FL_OFF, FL_SIZE)
    for i in range(4): A(f"v_mov_b32 v{4+i}, 0")
    A("s_cmp_eq_u32 s23, 0")
    A("s_cbranch_scc0 L_conv_z1")
    A(f"s_add_u32 s43, s25, {U_OFF}")
    A("v_add_u32 v8, s43, v3")
    A("v_cmp_gt_u32 vcc, 30, v1")
    A("s_and_saveexec_b64 s[44:45], vcc")
    A("ds_write_b128 v8, v[4:7]")
    A("s_mov_b64 exec, s[44:45]")
    A("s_branch L_conv_z2")
    A.label("L_conv_z1")
    A(f"v_mul_u32_u24 v8, {CP}, v1")
    A("s_add_u32 s43, s25, 4096")
    A("v_add_u32 v8, s43, v8")
    A("v_cmp_gt_u32 vcc, 8, v1")
    A("s_and_saveexec_b64 s[44:45], vcc")
    A("ds_write_b128 v8, v[4:7]")
    A("s_mov_b64 exec, s[44:45]")
    A.label("L_conv_z2")
    A("v_and_b32 v9, 15, v1")
    A("v_lshrrev_b32 v10, 4, v1")
    A("v_lshlrev_b32 v11, 5, v9")
    A("v_lshl_add_u32 v11, v10, 4, v11")
    A("s_lshl_b32 s47, s23, 8")
    A("s_add_u32 s47, s47, s25")
    A(f"s_add_u32 s43, s47, {U_OFF}")
    A("v_add_u32 v11, s43, v11")
    A("v_and_b32 v12, 7, v9")
    A("v_sub_u32 v12, 7, v12")
    A(f"v_mul_u32_u24 v12, {CP}, v12")
    A("v_lshrrev_b32 v13, 3, v9")
    A("v_lshlrev_b32 v13, 4, v13")
    A("v_sub_u32 v13, 16, v13")
    A("v_add_u32 v12, v12, v13")
    A("v_lshl_add_u32 v12, v10, 4, v12")
    A("v_add_u32 v12, s47, v12")
    A("v_lshlrev_b32 v13, 5, v9")
    A("v_lshl_add_u32 v13, v10, 3, v13")
    A("s_add_u32 s43, s42, %d" % (U_OFF + 480))
    A("v_add_u32 v14, s43, v13")
    A("s_lshl_b32 s46, s24, 12")
    A("s_add_u32 s46, s46, s41")
    A("s_lshl_b32 s48, s23, 12")
    A("s_add_u32 s49, s25, s48")
    A("v_add_u32 v8, s49, v3")
    A("s_xor_b32 s48, s48, 4096")
    A("s_add_u32 s49, s25, s48")
    A("v_add_u32 v15, s49, v3")
    ACC = 16
    SA = [48, 112]; SB = [80, 144]
    for i in range(32): A(f"v_mov_b32 v{ACC+i}, 0")
    A("s_lshl_b32 s47, s22, 4")
    A("s_waitcnt lgkmcnt(0)")
    A("s_lshr_b32 s27, s27, s47")
    A("s_lshl_b32 s27, s27, 16")
    A("s_waitcnt vmcnt(0)")
    S.stamp()
    A("s_barrier")
    S.stamp()
    def reads(e):
        a, b = SA[e % 2], SB[e % 2]
        lst = [f"ds_read_b128 v[{b}:{b+3}], v11 offset:{64*e}"]
        for p in range(8): lst.append(f"ds_read_b128 v[{a+4*p}:{a+4*p+3}], v12 offset:{512*(7-p) + 64*e}")
        for q in range(1, 8): lst.append(f"ds_read_b128 v[{b+4*q}:{b+4*q+3}], v11 offset:{512*q + 64*e}")
        return lst
    A("s_setprio " + os.environ.get("CVLOOP", "0"))
    rd = reads(0)
    for x in rd[:12]: A(x)
    A("s_waitcnt lgkmcnt(3)")
    first = rd[12:]
    for e in range(4):
        a, b = SA[e % 2], SB[e % 2]
        mf = []
        for q in range(8):
            for r in range(q, 8):
                c = ACC + 4 * r
                mf.append((q, f"v_mfma_f32_16x16x32_bf16 v[{c}:{c+3}], v[{a+4*(r-q)}:{a+4*(r-q)+3}], v[{b+4*q}:{b+4*q+3}], v[{c}:{c+3}]"))
        nxt = reads(e + 1) if e < 3 else []
        if e == 0:
            k = 0
            for idx, (q, m) in enumerate(mf):
                if idx < len(first): A(first[idx])
                if idx == 8: A("s_waitcnt lgkmcnt(0)")
                A(m)
                if idx >= 16 and nxt and (idx % 1 == 0): A(nxt.pop(0))
        else:
            A("s_waitcnt lgkmcnt(0)")
            for idx, (q, m) in enumerate(mf):
                A(m)
                if nxt: A(nxt.pop(0))
        assert not nxt
    S.stamp()
    A("s_setprio " + os.environ.get("CVPRIO", "2"))
    A("s_barrier")
    A("s_cmp_eq_u32 s23, 1")
    A("s_cbranch_scc1 L_conv_x1")
    FIN = 48
    for par in range(2):
        if par == 1: A.label("L_conv_x1")
        keep = 4 * par; send = 4 * (1 - par)
        for k in range(4):
            c = ACC + 4 * (send + k)
            A(f"ds_write_b128 v8, v[{c}:{c+3}] offset:{k*1024}")
        for k in range(4):
            A(f"ds_read_b64 v[{96+2*k}:{97+2*k}], v14 offset:{512*k}")
        A("s_waitcnt lgkmcnt(0)")
        A("s_barrier")
        for k in range(4):
            A(f"ds_read_b128 v[{64+4*k}:{67+4*k}], v15 offset:{k*1024}")
        A("s_waitcnt lgkmcnt(0)")
        for i in range(16):
            A(f"v_add_f32 v{FIN+i}, v{ACC+4*keep+i}, v{64+i}")
        if par == 0: A("s_branch L_conv_x2")
    A.label("L_conv_x2")
    for k in range(4):
        a = FIN + 4 * k
        for h in range(2):
            A(f"v_cvt_pk_bf16_f32 v110, v{a+2*h}, v{a+2*h+1}")
            A(f"v_lshlrev_b32 v111, 16, v{96+2*k+h}")
            A(f"v_and_b32 v112, 0xffff0000, v{96+2*k+h}")
            A("v_mul_f32 v111, s27, v111")
            A("v_mul_f32 v112, s27, v112")
            A("v_cvt_pk_bf16_f32 v111, v111, v112")
            A("v_lshlrev_b32 v112, 16, v110")
            A("v_and_b32 v110, 0xffff0000, v110")
            A("v_lshlrev_b32 v113, 16, v111")
            A("v_and_b32 v111, 0xffff0000, v111")
            A("v_add_f32 v112, v112, v113")
            A("v_add_f32 v110, v110, v111")
            A(f"v_cvt_pk_bf16_f32 v{120+2*k+h}, v112, v110")
        A(f"buffer_store_dwordx2 v[{120+2*k}:{121+2*k}], v13, s[28:31], s46 offen offset:{512*k} sc1")
    S.stamp()
    A("s_waitcnt vmcnt(0)")
    A("s_barrier")
    A("s_cmp_eq_u32 s21, 0")
    A("s_cbranch_scc0 L_conv_end")
    A("s_lshr_b32 s49, s2, 5")
    A("s_lshl_b32 s49, s49, 12")
    A("s_and_b32 s50, s2, 31")
    A("s_lshl_b32 s50, s50, 2")
    A("s_add_u32 s49, s49, s50")
    A("v_lshlrev_b32 v4, 7, v1")
    A("v_mov_b32 v5, 1")
    A("s_mov_b64 exec, 0xffffffff")
    A("buffer_store_dword v5, v4, s[32:35], s49 offen sc1")
    A.label("L_conv_end")
    A("s_mov_b64 exec, -1")
    S.stamp()
    S.flush(10, 21)
    A("s_endpgm")

def k2():
    A = Asm()
    import os
    only = os.environ.get("ONLY2", "")
    A("s_cmp_ge_u32 s2, 512")
    A("s_cbranch_scc1 L_k2_exit")
    A("s_cmp_lt_u32 s2, 256")
    A("s_cbranch_scc1 L_conv")
    if only == "conv": A("s_endpgm")
    gen_gemm2(A)
    if only == "gemm2":
        A.label("L_conv"); A("s_endpgm")
    else:
        gen_conv(A)
    A.label("L_k2_exit")
    A("s_endpgm")
    return A.finish()
```

```python
from gen_common import *
import os

L_UT = 0; L_W2 = 8192; L_PAR = 16384; L_PART = 20480; L_T16 = 28672; T16_STRIDE = 2112; L_K0 = 33024

def gen_prep(A):
    A.label("L_prep")
    S = Stamper(A, 0); S.start()
    A("s_load_dwordx16 s[4:19], s[0:1], 0")
    A("s_load_dwordx16 s[20:35], s[0:1], 64")
    A("s_mov_b32 s36, s2")
    A("v_lshrrev_b32 v2, 6, v0")
    A("v_and_b32 v1, 63, v0")
    A("v_readfirstlane_b32 s37, v2")
    A("s_lshr_b32 s38, s37, 1")
    A("s_and_b32 s39, s37, 1")
    A("s_lshl_b32 s40, s36, 2")
    A("s_lshl_b32 s42, s36, 1")
    A("s_add_u32 s42, s42, s38")
    A("s_lshl_b32 s43, s42, 8")
    A("s_lshl_b32 s60, s39, 7")
    A("s_add_u32 s43, s43, s60")
    A("v_lshl_add_u32 v3, v1, 1, s43")
    A("v_lshlrev_b32 v6, 4, v1")
    A("s_and_b32 s92, s36, 7")
    A("s_lshr_b32 s93, s36, 3")
    A("s_lshl_b32 s78, s92, 8")
    A("s_lshl_b32 s79, s93, 3")
    A("s_add_u32 s78, s78, s79")
    A("s_lshl_b32 s79, s37, 1")
    A("s_add_u32 s78, s78, s79")
    A("s_lshl_b32 s94, s92, 2")
    A("s_lshr_b32 s95, s93, 3")
    A("s_add_u32 s94, s94, s95")
    A("s_and_b32 s95, s93, 7")
    A("s_lshl_b32 s79, s78, 10")
    A("s_waitcnt lgkmcnt(0)")
    A("s_load_dword s41, s[18:19], s40")
    for i, b in enumerate((6, 8, 10, 12, 14, 16)):
        A(f"global_load_ushort v{10+i}, v3, s[{b}:{b+1}]")
    srd_from(A, 64, 4, 0, 2048 * 1024)
    srd_from(A, 68, 26, 0, 1792 * 1024)
    A("buffer_load_dwordx4 v[20:23], v6, s[64:67], s79 offen")
    A("buffer_load_dwordx4 v[24:27], v6, s[64:67], s79 offen offset:1024")
    A("global_load_dwordx4 v[28:31], v6, s[28:29]")
    A("s_lshl_b32 s62, s94, 16")
    A("s_lshl_b32 s63, s95, 7")
    A("s_add_u32 s62, s62, s63")
    A("s_lshl_b32 s63, s37, 14")
    A("s_add_u32 s62, s62, s63")
    A("v_lshrrev_b32 v4, 3, v1")
    A("v_lshlrev_b32 v4, 10, v4")
    A("v_and_b32 v5, 7, v1")
    A("v_lshl_add_u32 v4, v5, 4, v4")
    A("s_lshl_b32 s63, s37, 11")
    A(f"s_add_u32 m0, s63, {L_UT}")
    A("buffer_load_dwordx4 v4, s[64:67], s62 offen lds")
    A("s_add_u32 s62, s62, 8192")
    A(f"s_add_u32 m0, s63, {L_UT + 1024}")
    A("buffer_load_dwordx4 v4, s[64:67], s62 offen lds")
    A("s_lshl_b32 s72, s36, 2")
    A("s_add_u32 s72, s72, s37")
    A("s_cmp_ge_u32 s72, 896")
    A("s_cbranch_scc1 L_prep_now2a")
    A("s_lshr_b32 s73, s72, 4")
    A("s_lshr_b32 s74, s72, 1")
    A("s_and_b32 s74, s74, 7")
    A("s_and_b32 s75, s72, 1")
    A("s_lshl_b32 s76, s73, 15")
    A("s_lshl_b32 s77, s74, 7")
    A("s_add_u32 s76, s76, s77")
    A("s_lshl_b32 s77, s75, 6")
    A("s_add_u32 s76, s76, s77")
    A("v_lshrrev_b32 v5, 2, v1")
    A("v_lshlrev_b32 v5, 10, v5")
    A("v_and_b32 v7, 3, v1")
    A("v_lshl_add_u32 v5, v7, 4, v5")
    A(f"s_add_u32 m0, s63, {L_W2}")
    A("buffer_load_dwordx4 v5, s[68:71], s76 offen lds")
    A("s_add_u32 s76, s76, 16384")
    A(f"s_add_u32 m0, s63, {L_W2 + 1024}")
    A("buffer_load_dwordx4 v5, s[68:71], s76 offen lds")
    A.label("L_prep_now2a")
    if os.environ.get("PFP") == "1":
        srd_from(A, 44, 24, 0, 512 * 3584)
        A("v_mul_u32_u24 v33, 0x4925, v1")
        A("v_lshrrev_b32 v33, 18, v33")
        A("v_mul_u32_u24 v34, 14, v33")
        A("v_sub_u32 v34, v1, v34")
        A("v_mul_u32_u24 v33, 3584, v33")
        A("v_lshl_add_u32 v33, v34, 7, v33")
        A("s_lshl_b32 s60, s93, 2")
        A("s_add_u32 s60, s60, s37")
        A(f"s_mul_i32 s60, s60, {4*3584}")
        A("s_and_b32 s61, s92, 1")
        A("s_mul_i32 s61, s61, 1792")
        A("s_add_u32 s60, s60, s61")
        A("s_mov_b32 exec_hi, 0x00ffffff")
        A("buffer_load_dword v34, v33, s[44:47], s60 offen")
        A("s_mov_b64 exec, -1")
        A("s_xor_b32 s60, s78, 256")
        A("s_lshl_b32 s60, s60, 10")
        A("v_and_b32 v35, 15, v1")
        A("v_lshlrev_b32 v35, 7, v35")
        A("s_mov_b64 exec, 0xffff")
        A("buffer_load_dword v36, v35, s[64:67], s60 offen")
        A("s_mov_b64 exec, -1")
    srd_from(A, 44, 34, KR_OFF, KR_SIZE)
    srd_from(A, 48, 34, UT_OFF, UT_SIZE)
    srd_from(A, 52, 34, W2F_OFF, W2F_SIZE)
    srd_from(A, 56, 34, G_OFF, G_SIZE)
    srd_from(A, 84, 34, FL_OFF, FL_SIZE)
    A(f"s_mul_i32 s80, s38, {T16_STRIDE}")
    A(f"s_add_u32 s80, s80, {L_T16 + 16}")
    A("v_and_b32 v8, 15, v1")
    A("v_cmp_eq_u32 s[88:89], 15, v8")
    A("v_add_u32 v8, 1, v8")
    A("v_cvt_f32_u32 v8, v8")
    A("v_lshrrev_b32 v9, 4, v1")
    A("s_lshl_b32 s60, s37, 10")
    A(f"s_add_u32 s60, s60, {L_PAR}")
    A("v_lshlrev_b32 v9, 6, v9")
    A("v_add_u32 v9, s60, v9")
    A("v_lshl_add_u32 v7, v1, 4, s60")
    ACC = 64
    for i in range(16): A(f"v_mov_b32 v{ACC+i}, 0")
    S.stamp()
    A("s_waitcnt lgkmcnt(0)")
    A("s_lshl_b32 s60, s38, 4")
    A("s_lshr_b32 s41, s41, s60")
    A("s_lshl_b32 s41, s41, 16")
    A("v_mov_b32 v16, s41")
    A(f"v_mul_f32 v16, {LOG2E:#x}, v16")
    A("v_exp_f32 v16, v16")
    A("v_cvt_pk_bf16_f32 v16, v16, v16")
    A("v_lshlrev_b32 v32, 16, v16")
    A("s_waitcnt vmcnt(%d)" % (7 if os.environ.get("PFP") == "1" else 5))
    S.stamp()
    for i in range(6):
        A(f"v_lshlrev_b32 v{10+i}, 16, v{10+i}")
    A("v_mul_f32 v10, v32, v10")
    A("v_mul_f32 v11, v32, v11")
    A("v_mul_f32 v12, v32, v12")
    A("v_mul_f32 v13, v32, v13")
    A(f"v_mul_f32 v16, {LOG2E:#x}, v10")
    A(f"v_mul_f32 v17, {INV2PI:#x}, v11")
    A("v_mul_f32 v18, v14, v12")
    A("v_fma_f32 v18, -v15, v13, v18")
    A("v_mul_f32 v19, v14, v13")
    A("v_fma_f32 v19, v15, v12, v19")
    A("ds_write_b128 v7, v[16:19]")
    PARS = [80, 152]
    def par_reads(s):
        for j in range(4):
            A(f"ds_read_b128 v[{PARS[s%2]+4*j}:{PARS[s%2]+4*j+3}], v9 offset:{s*256 + j*16}")
    A("s_waitcnt lgkmcnt(0)")
    par_reads(0)
    A("v_mov_b32 v10, v18")
    for sh in (1, 2, 4, 8):
        A(f"v_add_f32 v10, v10, v10 row_shr:{sh} row_mask:0xf bank_mask:0xf bound_ctrl:0")
    A("v_add_f32 v10, v10, v10 row_bcast:15 row_mask:0xa bank_mask:0xf")
    A("v_add_f32 v10, v10, v10 row_bcast:31 row_mask:0xc bank_mask:0xf")
    A("s_lshl_b32 s61, s37, 2")
    A(f"s_add_u32 s61, s61, {L_K0}")
    A("v_mov_b32 v11, s61")
    A("v_cmp_eq_u32 vcc, 63, v1")
    A("s_and_saveexec_b64 s[90:91], vcc")
    A("ds_write_b32 v11, v10")
    A("s_mov_b64 exec, s[90:91]")
    F = 96; T = 104; G = 112; BO = 120; AO = 136
    for s in range(4):
        PAR = PARS[s % 2]
        A("s_waitcnt lgkmcnt(0)")
        if s < 3: par_reads(s + 1)
        for j in range(4):
            A(f"v_mul_f32 v{T+2*j}, v{PAR+4*j}, v8")
            A(f"v_mul_f32 v{T+2*j+1}, v{PAR+4*j+1}, v8")
        for j in range(4):
            A(f"v_exp_f32 v{T+2*j}, v{T+2*j}")
            A(f"v_fract_f32 v{T+2*j+1}, v{T+2*j+1}")
        for j in range(4):
            A(f"v_cos_f32 v{F+2*j}, v{T+2*j+1}")
            A(f"v_sin_f32 v{F+2*j+1}, v{T+2*j+1}")
        for j in range(4):
            A(f"v_pk_mul_f32 v[{F+2*j}:{F+2*j+1}], v[{F+2*j}:{F+2*j+1}], v[{T+2*j}:{T+2*j+1}] op_sel:[0,0] op_sel_hi:[1,0]")
        def square():
            for j in range(4):
                f = f"v[{F+2*j}:{F+2*j+1}]"; t = f"v[{T+2*j}:{T+2*j+1}]"
                A(f"v_pk_mul_f32 {t}, {f}, {f} op_sel:[0,0] op_sel_hi:[0,1]")
            for j in range(4):
                f = f"v[{F+2*j}:{F+2*j+1}]"; t = f"v[{T+2*j}:{T+2*j+1}]"
                A(f"v_pk_fma_f32 {f}, {f}, {f}, {t} op_sel:[1,1,0] op_sel_hi:[1,0,1] neg_lo:[1,0,0]")
        for z in range(4):
            if z > 0: square()
            for j in range(4):
                A(f"v_cvt_pk_bf16_f32 v{BO+4*z+j}, v{F+2*j}, v{F+2*j+1}")
        for z in range(4):
            square()
            for j in range(4):
                f = f"v[{F+2*j}:{F+2*j+1}]"; t = f"v[{T+2*j}:{T+2*j+1}]"; c = f"v[{PAR+4*j+2}:{PAR+4*j+3}]"
                A(f"v_pk_mul_f32 {t}, {c}, {f} op_sel:[0,0] op_sel_hi:[0,1]")
            for j in range(4):
                f = f"v[{F+2*j}:{F+2*j+1}]"; t = f"v[{T+2*j}:{T+2*j+1}]"; c = f"v[{PAR+4*j+2}:{PAR+4*j+3}]"
                g = f"v[{G+2*j}:{G+2*j+1}]"
                A(f"v_pk_fma_f32 {g}, {c}, {f}, {t} op_sel:[1,1,0] op_sel_hi:[1,0,1] neg_lo:[1,0,0]")
            if z == 0:
                for j in range(4):
                    A(f"v_cndmask_b32 v{G+2*j}, v{G+2*j}, v{PAR+4*j+2}, s[88:89]")
                    A(f"v_cndmask_b32 v{G+2*j+1}, v{G+2*j+1}, v{PAR+4*j+3}, s[88:89]")
            for j in range(4):
                A(f"v_cvt_pk_bf16_f32 v{AO+4*z+j}, v{G+2*j}, -v{G+2*j+1}")
        for z in range(4):
            A(f"v_mfma_f32_16x16x32_bf16 v[{ACC+4*z}:{ACC+4*z+3}], v[{AO+4*z}:{AO+4*z+3}], v[{BO+4*z}:{BO+4*z+3}], v[{ACC+4*z}:{ACC+4*z+3}]")
    S.stamp()
    PAR = 80; T = 104
    A("s_lshl_b32 s60, s38, 12")
    A(f"s_add_u32 s60, s60, {L_PART}")
    A("v_add_u32 v10, s60, v6")
    A("s_cmp_eq_u32 s39, 0")
    A("s_cbranch_scc1 L_prep_h0a")
    for z in range(4):
        A(f"ds_write_b128 v10, v[{ACC+4*z}:{ACC+4*z+3}] offset:{z*1024}")
    A.label("L_prep_h0a")
    A("s_waitcnt vmcnt(0)")
    A("v_mov_b32 v16, 0")
    A("v_mov_b32 v17, 0")
    for k in range(4):
        A(f"v_dot2_f32_bf16 v16, v{20+k}, v{28+k}, v16")
        A(f"v_dot2_f32_bf16 v17, v{24+k}, v{28+k}, v17")
    for sh in (1, 2, 4, 8):
        for acc in (16, 17):
            A(f"v_add_f32 v{acc}, v{acc}, v{acc} row_shr:{sh} row_mask:0xf bank_mask:0xf bound_ctrl:0")
    for acc in (16, 17): A(f"v_add_f32 v{acc}, v{acc}, v{acc} row_bcast:15 row_mask:0xa bank_mask:0xf")
    for acc in (16, 17): A(f"v_add_f32 v{acc}, v{acc}, v{acc} row_bcast:31 row_mask:0xc bank_mask:0xf")
    for op in ("v_cvt_pk_bf16_f32 v{a}, v{a}, v{a}", "v_lshlrev_b32 v{a}, 16, v{a}", "v_mul_f32 v{a}, %#x, v{a}" % (LOG2E ^ 0x80000000),
               "v_exp_f32 v{a}, v{a}", "v_add_f32 v{a}, 1.0, v{a}", "v_rcp_f32 v{a}, v{a}", "v_cvt_pk_bf16_f32 v{a}, v{a}, v{a}"):
        for acc in (16, 17): A(op.format(a=acc))
    A("v_lshlrev_b32 v12, 16, v16")
    A("v_lshlrev_b32 v14, 16, v17")
    A("v_sub_f32 v13, 1.0, v12")
    A("v_sub_f32 v15, 1.0, v14")
    A("v_cvt_pk_bf16_f32 v13, v13, v13")
    A("v_cvt_pk_bf16_f32 v15, v15, v15")
    A("v_lshlrev_b32 v13, 16, v13")
    A("v_lshlrev_b32 v15, 16, v15")
    A("s_lshl_b32 s79, s78, 3")
    A("v_mov_b32 v9, 0")
    A("v_cmp_eq_u32 vcc, 63, v1")
    A("s_and_saveexec_b64 s[90:91], vcc")
    A(f"buffer_store_dwordx4 v[12:15], v9, s[56:59], s79 offen{STORE_MOD}")
    A("s_mov_b64 exec, s[90:91]")
    A("s_cmp_ge_u32 s72, 896")
    A("s_cbranch_scc1 L_prep_now2b")
    A("v_lshrrev_b32 v12, 2, v1")
    A("v_lshlrev_b32 v12, 6, v12")
    A("v_and_b32 v13, 3, v1")
    A("v_lshl_add_u32 v12, v13, 4, v12")
    A("s_lshl_b32 s63, s37, 11")
    A(f"s_add_u32 s63, s63, {L_W2}")
    A("v_add_u32 v12, s63, v12")
    A("ds_read_b64_tr_b16 v[20:21], v12")
    A("ds_read_b64_tr_b16 v[22:23], v12 offset:1024")
    A("ds_read_b64_tr_b16 v[24:25], v12 offset:8")
    A("ds_read_b64_tr_b16 v[26:27], v12 offset:1032")
    A("s_mul_i32 s76, s74, 56")
    A("s_add_u32 s76, s76, s73")
    A("s_lshl_b32 s76, s76, 2")
    A("s_lshl_b32 s77, s75, 1")
    A("s_add_u32 s76, s76, s77")
    A("s_lshl_b32 s76, s76, 10")
    A("s_waitcnt lgkmcnt(0)")
    A(f"buffer_store_dwordx4 v[20:23], v6, s[52:55], s76 offen{STORE_MOD}")
    A(f"buffer_store_dwordx4 v[24:27], v6, s[52:55], s76 offen offset:1024{STORE_MOD}")
    A.label("L_prep_now2b")
    A("v_lshrrev_b32 v32, 4, v1")
    A("v_lshlrev_b32 v32, 3, v32")
    A("v_bfe_u32 v33, v1, 2, 2")
    A("v_add_u32 v32, v32, v33")
    A("v_lshlrev_b32 v32, 7, v32")
    A("v_and_b32 v33, 3, v1")
    A("v_lshl_add_u32 v32, v33, 3, v32")
    A("s_lshl_b32 s63, s37, 5")
    A(f"s_add_u32 s63, s63, {L_UT}")
    A("v_add_u32 v32, s63, v32")
    A("s_waitcnt lgkmcnt(0)")
    A("s_barrier")
    S.stamp()
    A("ds_read_b64_tr_b16 v[36:37], v32")
    A("ds_read_b64_tr_b16 v[38:39], v32 offset:512")
    A("ds_read_b64_tr_b16 v[40:41], v32 offset:4096")
    A("ds_read_b64_tr_b16 v[42:43], v32 offset:4608")
    A("s_cmp_eq_u32 s39, 0")
    A("s_cbranch_scc0 L_prep_h1b")
    for z in range(4):
        A(f"ds_read_b128 v[{PAR+4*z}:{PAR+4*z+3}], v10 offset:{z*1024}")
    A("s_lshl_b32 s61, s38, 3")
    A(f"s_add_u32 s61, s61, {L_K0}")
    A("v_mov_b32 v11, s61")
    A("ds_read_b64 v[12:13], v11")
    A("v_lshrrev_b32 v14, 4, v1")
    A("v_lshlrev_b32 v14, 2, v14")
    A("v_and_b32 v15, 15, v1")
    A("v_lshlrev_b32 v15, 1, v15")
    A("v_add_u32 v15, s80, v15")
    for r in range(4):
        A(f"v_add_u32 v{16+r}, {r+1}, v14")
        A(f"v_and_b32 v{16+r}, 15, v{16+r}")
        A(f"v_lshl_add_u32 v{16+r}, v{16+r}, 5, v15")
    A("s_waitcnt lgkmcnt(0)")
    for z in range(4):
        for r in range(4):
            A(f"v_add_f32 v{ACC+4*z+r}, v{ACC+4*z+r}, v{PAR+4*z+r}")
        A(f"v_cvt_pk_bf16_f32 v{T+2*z}, v{ACC+4*z}, v{ACC+4*z+1}")
        A(f"v_cvt_pk_bf16_f32 v{T+2*z+1}, v{ACC+4*z+2}, v{ACC+4*z+3}")
        A(f"ds_write_b16 v16, v{T+2*z} offset:{z*512}")
        A(f"ds_write_b16_d16_hi v17, v{T+2*z} offset:{z*512}")
        A(f"ds_write_b16 v18, v{T+2*z+1} offset:{z*512}")
        A(f"ds_write_b16_d16_hi v19, v{T+2*z+1} offset:{z*512}")
    A("v_add_f32 v12, v12, v13")
    A("v_cvt_pk_bf16_f32 v12, v12, v12")
    A("v_lshlrev_b32 v12, 16, v12")
    A("s_sub_u32 s61, s80, 4")
    A("v_mov_b32 v11, s61")
    A("ds_write_b32 v11, v12")
    A.label("L_prep_h1b")
    A("s_lshl_b32 s61, s95, 18")
    A("s_lshl_b32 s62, s37, 16")
    A("s_add_u32 s61, s61, s62")
    A("s_lshl_b32 s60, s94, 7")
    A("s_add_u32 s61, s61, s60")
    A("v_and_b32 v13, 15, v1")
    A("v_lshlrev_b32 v13, 12, v13")
    A("v_lshrrev_b32 v14, 4, v1")
    A("v_lshl_add_u32 v13, v14, 4, v13")
    A("s_waitcnt lgkmcnt(0)")
    A(f"buffer_store_dwordx4 v[36:39], v13, s[48:51], s61 offen{STORE_MOD}")
    A(f"buffer_store_dwordx4 v[40:43], v13, s[48:51], s61 offen offset:64{STORE_MOD}")
    A(f"s_mul_i32 s60, s42, {KR_STRIDE}")
    A("s_lshl_b32 s61, s39, 11")
    A("s_sub_u32 s62, s60, s61")
    A(f"s_add_u32 s62, s62, {255*16 - 1024}")
    A("v_sub_u32 v12, 0, v6")
    A("v_add_u32 v12, s62, v12")
    A(f"s_movk_i32 s63, {KR1}")
    A("s_barrier")
    S.stamp()
    def lo(d, l, h): A(f"v_lshl_or_b32 v{d}, v{h}, 16, v{l}")
    def stores(R, off):
        A(f"buffer_store_dwordx4 v[{R}:{R+3}], v12, s[44:47], 0 offen offset:{off}{STORE_MOD}")
        A(f"buffer_store_dwordx4 v[{R+4}:{R+7}], v12, s[44:47], s63 offen offset:{off}{STORE_MOD}")
    A("s_cmp_eq_u32 s39, 0")
    A("s_cbranch_scc1 L_prep_e0")
    A(f"s_add_u32 s60, s80, {1536 + 254}")
    A("v_lshl_add_u32 v14, v1, 1, s60")
    A("v_and_b32 v15, 1, v1")
    A("v_lshl_add_u32 v15, v15, 1, v14")
    for n2 in range(2):
        A(f"ds_read_u16 v{80+3*n2}, v14 offset:{128*n2}")
        A(f"ds_read_u16 v{81+3*n2}, v14 offset:{128*n2+2}")
        A(f"ds_read_u16 v{82+3*n2}, v15 offset:{128*n2}")
    for i in range(4): A(f"v_mov_b32 v{104+i}, 0")
    if os.environ.get("FUSED") == "1":
        A("s_lshl_b32 s61, s95, 5")
        A("s_lshr_b32 s60, s36, 6")
        A("s_lshl_b32 s60, s60, 3")
        A("s_add_u32 s61, s61, s60")
        A("s_add_u32 s61, s61, s92")
        A("s_lshl_b32 s61, s61, 7")
    else:
        A("s_lshl_b32 s61, s36, 7")
    A("s_waitcnt lgkmcnt(0)")
    for n2 in range(2):
        a, c, t = 80+3*n2, 81+3*n2, 82+3*n2; R = 88 + 8*n2
        lo(R, c, c); lo(R+1, c, t); lo(R+2, a, a); lo(R+3, a, a)
        lo(R+4, c, c); lo(R+5, t, a); lo(R+6, a, a); lo(R+7, a, a)
        stores(R, 1024 if n2 == 0 else 0)
    A("s_cmp_eq_u32 s38, 0")
    A("s_cbranch_scc0 L_prep_end")
    A("s_mov_b64 exec, 0xff")
    A(f"buffer_store_dwordx4 v[104:107], v6, s[84:87], s61 offen{STORE_MOD}")
    A("s_branch L_prep_end")
    A.label("L_prep_e0")
    A(f"s_add_u32 s60, s80, {1024 + 254}")
    A("v_lshl_add_u32 v14, v1, 2, s60")
    for i in range(3): A(f"ds_read_u16 v{80+i}, v14 offset:{2*i}")
    A("s_sub_u32 s60, s80, 4")
    A("v_lshl_add_u32 v15, v1, 4, s60")
    A(f"s_add_u32 s60, s80, 510")
    A("v_lshl_add_u32 v16, v1, 3, s60")
    A(f"s_add_u32 s60, s80, 508")
    A("v_mov_b32 v17, s60")
    W = 108
    A("s_mov_b64 exec, 0xffffffff")
    for i in range(9): A(f"ds_read_u16 v{W+i}, v15 offset:{2*i}")
    A("s_mov_b32 exec_lo, 0")
    A("s_mov_b32 exec_hi, -1")
    for i, o in enumerate((0, 0, 0, 2, 4, 4, 4, 6, 8)):
        if i > 0: A(f"ds_read_u16 v{W+i}, v16 offset:{o}")
    A("s_mov_b32 exec_hi, 0xfffffffe")
    A(f"ds_read_u16 v{W}, v16")
    A("s_mov_b32 exec_hi, 1")
    A(f"ds_read_u16 v{W}, v17")
    A("s_mov_b64 exec, -1")
    for i in range(4): A(f"v_mov_b32 v{104+i}, 0")
    A("v_lshrrev_b32 v18, 2, v1")
    A(f"v_mul_u32_u24 v18, {KR1}, v18")
    A("v_and_b32 v19, 3, v1")
    A("v_lshl_add_u32 v18, v19, 4, v18")
    A(f"s_mul_i32 s60, s42, {KR_STRIDE}")
    A("s_add_u32 s60, s60, 4096")
    A("s_waitcnt lgkmcnt(0)")
    p0, p1, p2 = 80, 81, 82; R = 88
    lo(R, p2, p2); lo(R+1, p1, p1); lo(R+2, p1, p0); lo(R+3, p0, p0)
    lo(R+4, p2, p1); lo(R+5, p1, p1); lo(R+6, p0, p0); lo(R+7, p0, p0)
    stores(R, 0)
    R2 = 120
    for k in range(4): lo(R2 + k, W + 8 - 2*k, W + 7 - 2*k)
    for k in range(4): lo(R2 + 4 + k, W + 7 - 2*k, W + 6 - 2*k)
    stores(R2, 1024)
    A("s_mov_b64 exec, 0xff")
    A(f"buffer_store_dwordx4 v[104:107], v18, s[44:47], s60 offen{STORE_MOD}")
    A.label("L_prep_end")
    A("s_mov_b64 exec, -1")
    S.stamp()
    if STAMPS:
        A("s_waitcnt vmcnt(0)"); S.stamp()
    S.flush(34, 37)
    if os.environ.get("FUSED") == "1":
        from gen_fused import prep_tail
        prep_tail(A)
    else:
        A("s_endpgm")
```

```python
import os, sys
os.environ["FUSED"] = "1"
from gen_common import *

F2_OFF = 0x1120000; F2_SIZE = 24 * 256

def srds(A):
    A("s_load_dwordx2 s[92:93], s[0:1], 112")
    A("s_load_dwordx2 s[84:85], s[0:1], 120")
    A("s_mov_b32 s94, 256")
    A(f"s_mov_b32 s95, {SRD3:#x}")
    A(f"s_mov_b32 s86, {F2_SIZE}")
    A(f"s_mov_b32 s87, {SRD3:#x}")
    A("s_waitcnt lgkmcnt(0)")
    A(f"s_add_u32 s84, s84, {F2_OFF:#x}")
    A("s_addc_u32 s85, s85, 0")

def spin(A, tag, mask, sleep, srd, x4=False, first_issued=False):
    A("s_mov_b32 s90, 0")
    A(f"s_mov_b64 exec, {mask}")
    if first_issued: A(f"s_branch L_wc_{tag}")
    A.label(f"L_wp_{tag}")
    if x4: A(f"buffer_load_dwordx4 v[64:67], v60, s[{srd}:{srd+3}], 0 offen sc1")
    else: A(f"buffer_load_dword v64, v60, s[{srd}:{srd+3}], 0 offen sc1")
    A("s_waitcnt vmcnt(0)")
    A.label(f"L_wc_{tag}")
    if x4:
        A("v_and_b32 v64, v64, v65")
        A("v_and_b32 v66, v66, v67")
        A("v_and_b32 v64, v64, v66")
    A("s_add_u32 s90, s90, 1")
    A("v_cmp_ne_u32 vcc, 1, v64")
    A("s_cmp_eq_u64 vcc, 0")
    A(f"s_cbranch_scc1 L_wg_{tag}")
    A("s_cmp_lt_u32 s90, 0x8000")
    A(f"s_sleep {sleep}")
    A(f"s_cbranch_scc1 L_wp_{tag}")
    A.label(f"L_wg_{tag}")
    A("s_mov_b64 exec, -1")

def signal(A, wave_s, off_s, tag):
    A("s_mov_b64 exec, -1")
    srds(A)
    A(f"s_cmp_eq_u32 s{wave_s}, 0")
    A(f"s_cbranch_scc0 L_sb_{tag}")
    A("v_mov_b32 v60, 0")
    A("s_mov_b64 exec, 1")
    A("buffer_load_dword v64, v60, s[92:95], 0 offen sc1")
    A("s_waitcnt vmcnt(0)")
    spin(A, "z" + tag, 1, 8, 92, first_issued=True)
    A.label(f"L_sb_{tag}")
    A("s_waitcnt vmcnt(0)")
    A("s_barrier")
    A(f"s_cmp_eq_u32 s{wave_s}, 0")
    A(f"s_cbranch_scc0 L_sig_{tag}")
    A(f"v_mov_b32 v60, s{off_s}")
    A("v_mov_b32 v61, 1")
    A("s_mov_b64 exec, 1")
    A("buffer_store_dword v61, v60, s[84:87], 0 offen sc1")
    A("s_mov_b64 exec, -1")
    A.label(f"L_sig_{tag}")

def g1_tail(A):
    A("s_lshl_b32 s50, s23, 8")
    A("s_lshl_b32 s51, s24, 2")
    A("s_add_u32 s50, s50, s51")
    A("s_add_u32 s50, s50, 2048")
    signal(A, 20, 50, "g1")
    A("s_branch L_g2_wait")

def prep_tail(A):
    A("s_lshl_b32 s50, s95, 8")
    A("s_lshr_b32 s51, s36, 6")
    A("s_lshl_b32 s51, s51, 3")
    A("s_add_u32 s51, s51, s92")
    A("s_lshl_b32 s51, s51, 2")
    A("s_add_u32 s50, s50, s51")
    signal(A, 37, 50, "prep")
    A("s_branch L_conv")

def conv_wait(A):
    A("s_lshr_b32 s91, s2, 5")
    A("s_lshl_b32 s91, s91, 8")
    A("s_cmp_eq_u32 s21, 0")
    A("s_cbranch_scc0 L_wd_conv")
    A("v_lshl_add_u32 v60, v1, 2, s91")
    spin(A, "conv", "0xffffffff", int(os.environ.get("CSLEEP", "8")), 84)
    A.label("L_wd_conv")
    A("s_barrier")

def idle_entry(A):
    A.label("L_idle")
    srds(A)
    A("v_lshrrev_b32 v2, 6, v0")
    A("v_and_b32 v1, 63, v0")
    A("v_readfirstlane_b32 s20, v2")
    A("s_cmp_eq_u32 s20, 0")
    A("s_cbranch_scc0 L_g2_wait")
    A("v_mov_b32 v60, 0")
    A("s_cmp_eq_u32 s2, 480")
    A("s_cbranch_scc0 L_idle_w")
    for i in range(4): A(f"v_mov_b32 v{64+i}, 0")
    A("v_lshlrev_b32 v61, 4, v1")
    for i in range(6):
        A(f"s_mov_b32 s91, {i*1024}")
        A("buffer_store_dwordx4 v[64:67], v61, s[84:87], s91 offen sc1")
    A("s_waitcnt vmcnt(0)")
    A("v_mov_b32 v61, 1")
    A("s_mov_b64 exec, 1")
    A("buffer_store_dword v61, v60, s[92:95], 0 offen sc1")
    A("s_mov_b64 exec, -1")
    A.label("L_idle_w")
    spin(A, "zi", 1, 32, 92)

def g2_wait(A):
    A.label("L_g2_wait")
    A("v_lshrrev_b32 v2, 6, v0")
    A("v_and_b32 v1, 63, v0")
    A("v_readfirstlane_b32 s20, v2")
    A("s_sub_u32 s47, s2, 256")
    A("s_and_b32 s21, s47, 7")
    A("s_lshr_b32 s22, s47, 6")
    A("s_lshl_b32 s23, s21, 2")
    A("s_add_u32 s23, s23, s22")
    A("s_lshr_b32 s23, s23, 1")
    A("s_lshl_b32 s23, s23, 8")
    A("s_add_u32 s23, s23, 2048")
    A("s_cmp_eq_u32 s20, 0")
    A("s_cbranch_scc0 L_wd_g2")
    A("v_lshl_add_u32 v60, v1, 2, s23")
    spin(A, "g2a", "0x3fff", int(os.environ.get("GSLEEP", "8")), 84)
    A("v_lshrrev_b32 v60, 3, v1")
    A("v_lshlrev_b32 v60, 8, v60")
    A("v_and_b32 v61, 7, v1")
    A("v_lshl_add_u32 v60, v61, 4, v60")
    spin(A, "g2b", -1, int(os.environ.get("GSLEEP", "8")), 84, x4=True)
    A.label("L_wd_g2")
    A("s_barrier")

def fused():
    from gen_prep import gen_prep
    from gen_gemm1 import gen_gemm1
    from gen_k2 import gen_gemm2, gen_conv
    A = Asm()
    A("s_cmp_ge_u32 s2, 512")
    A("s_cbranch_scc1 L_exit")
    A("s_cmp_lt_u32 s2, 256")
    A("s_cbranch_scc1 L_prep")
    A("s_cmp_ge_u32 s2, 480")
    A("s_cbranch_scc1 L_idle")
    gen_gemm1(A)
    gen_prep(A)
    idle_entry(A)
    g2_wait(A)
    gen_gemm2(A)
    gen_conv(A)
    A.label("L_exit")
    A("s_endpgm")
    return A.finish()

def main(path):
    hdr = open("cdna_kernels/" + NAME + ".s.ref").read().split("\n")
    top = [l for l in hdr if l.startswith(";") and "@launch" not in l and "Override launch" not in l and "grid=ceil" not in l]
    top = top[:[i for i, l in enumerate(top) if "offset 120" in l][0] + 1]
    out = "\n".join(top) + "\n"
    kn = NAME + "_kernel"
    out += "; @launch grid=(512,1,1) block=(256,1,1) lds=81920\n"
    out += '.amdgcn_target "amdgcn-amd-amdhsa--gfx950"\n.text\n'
    out += kernel_header(kn) + fused() + "\n"
    out += kernel_desc(kn, 256, 102)
    open(path, "w").write(out)

if __name__ == "__main__":
    main(sys.argv[1])
```

```python
from gen_common import *
import os

XS = 16384; NX = 3
WB = NX * XS; WS = 8192; NW = 4
NCH = 16

def gen_gemm1(A):
    A.label("L_gemm1")
    if os.environ.get("FUSED") != "1":
        A("s_cmp_ge_u32 s2, 480")
        A("s_cbranch_scc1 L_k1_exit")
    S = Stamper(A, 0, 210); S.start()
    if os.environ.get("G1PRIO"): A("s_setprio " + os.environ["G1PRIO"])
    A("s_load_dwordx2 s[4:5], s[0:1], 0")
    A("s_load_dwordx2 s[6:7], s[0:1], 80")
    A("s_load_dwordx2 s[8:9], s[0:1], 120")
    A("v_lshrrev_b32 v2, 6, v0")
    A("v_and_b32 v1, 63, v0")
    A("v_readfirstlane_b32 s20, v2")
    A("s_and_b32 s21, s2, 7")
    A("s_sub_u32 s22, s2, 256")
    A("s_lshr_b32 s22, s22, 3")
    A("s_mul_i32 s25, s22, 37")
    A("s_lshr_b32 s25, s25, 8")
    A("s_mul_i32 s26, s25, 7")
    A("s_sub_u32 s26, s22, s26")
    A("s_lshr_b32 s23, s21, 1")
    A("s_lshl_b32 s23, s23, 2")
    A("s_add_u32 s23, s23, s25")
    A("s_and_b32 s24, s21, 1")
    A("s_mul_i32 s24, s24, 7")
    A("s_add_u32 s24, s24, s26")
    A("v_lshrrev_b32 v3, 3, v1")
    A("v_and_b32 v4, 7, v1")
    A("v_lshrrev_b32 v5, 4, v1")
    A("v_xor_b32 v4, v4, v5")
    A("v_lshlrev_b32 v3, 10, v3")
    A("v_lshl_add_u32 v200, v4, 4, v3")
    A("v_xor_b32 v201, 64, v200")
    A(f"v_add_u32 v201, {7168}, v201")
    A(f"v_add_u32 v202, {2*7168}, v200")
    A(f"v_add_u32 v203, {2*7168}, v201")
    A("v_lshrrev_b32 v3, 4, v1")
    A("v_and_b32 v4, 15, v1")
    A("v_lshlrev_b32 v5, 1, v3")
    A("v_xor_b32 v4, v4, v5")
    A("s_and_b32 s27, s20, 1")
    A("s_lshl_b32 s27, s27, 3")
    A("v_xor_b32 v4, s27, v4")
    A("v_mul_u32_u24 v3, 3584, v3")
    A("v_lshl_add_u32 v11, v4, 4, v3")
    A(f"v_add_u32 v9, {4*3584 - 1024}, v11")
    A("s_lshl_b32 s32, s23, 17")
    A("s_lshl_b32 s33, s20, 15")
    A("s_add_u32 s32, s32, s33")
    A("s_lshl_b32 s34, s24, 8")
    A(f"s_mul_i32 s35, s20, {8*3584}")
    A("s_add_u32 s34, s34, s35")
    A("s_lshl_b32 s36, s20, 12")
    A("s_lshl_b32 s35, s20, 11")
    A("s_lshl_b32 s44, s22, 2")
    A("s_add_u32 s44, s44, s20")
    A("s_lshl_b32 s44, s44, 6")
    A("v_add_u32 v3, s44, v1")
    A("v_lshlrev_b32 v204, 7, v3")
    A("v_mul_u32_u24 v4, 74899, v3")
    A("v_lshrrev_b32 v4, 20, v4")
    A("v_mul_u32_u24 v5, 14, v4")
    A("v_sub_u32 v5, v3, v5")
    A("v_mul_u32_u24 v4, 3584, v4")
    A("v_lshl_add_u32 v205, v5, 7, v4")
    A("s_and_b32 s45, s21, 1")
    A("s_mul_i32 s45, s45, 1792")
    A("s_lshr_b32 s46, s21, 1")
    A("s_lshl_b32 s46, s46, 19")
    A("s_waitcnt lgkmcnt(0)")
    srd_from(A, 12, 4, 0, 2048 * 1024)
    srd_from(A, 16, 6, 0, 512 * 3584)
    seq = []
    def issue_x(X):
        seq.append((("X", X), 4))
        return [f"s_add_u32 m0, s36, {(X % NX) * XS}"] + [f"buffer_load_dwordx4 v{200+i}, s[12:15], s32 offen offset:{1024*i} lds" for i in range(4)] + ["s_add_u32 s32, s32, 128"]
    def issue_w(c):
        seq.append((("W", c), 2))
        return [f"s_add_u32 m0, s35, {WB + (c % NW) * WS}",
                "buffer_load_dwordx4 v11, s[16:19], s34 offen lds",
                "buffer_load_dwordx4 v9, s[16:19], s34 offen offset:1024 lds",
                f"s_add_u32 s34, s34, {32*3584}"]
    def allowed(c):
        last = max(i for i, (t, n) in enumerate(seq) if t in (("X", c >> 1), ("W", c)))
        return sum(n for (t, n) in seq[last + 1:])
    FINE = os.environ.get("FINE") == "1"
    if FINE: S.stamp()
    for x in issue_x(0): A(x)
    if FINE: S.stamp()
    for x in issue_w(0) + issue_w(1): A(x)
    if FINE: S.stamp()
    if os.environ.get("NOPF1") != "1":
        A("s_add_u32 s48, s4, s46")
        A("s_addc_u32 s49, s5, 0")
        A("s_mov_b32 s50, 0x80000")
        A(f"s_mov_b32 s51, {SRD3:#x}")
        A("buffer_load_dword v206, v205, s[16:19], s45 offen")
        A("buffer_load_dword v207, v204, s[48:51], 0 offen")
        seq.append((("P", 0), 2))
    if FINE: S.stamp()
    for x in issue_x(1): A(x)
    if FINE: S.stamp()
    PRO = int(os.environ.get("PRO", "0"))
    if PRO == 0:
        for x in issue_w(2) + issue_w(3) + issue_x(2): A(x)
    elif PRO == 1:
        for x in issue_w(2): A(x)
    S.stamp()
    srd_from(A, 28, 8, HF_OFF, HF_SIZE)
    A("s_lshr_b32 s37, s20, 1")
    A("s_and_b32 s38, s20, 1")
    A("v_and_b32 v3, 15, v1")
    A("v_lshrrev_b32 v4, 1, v3")
    A("v_lshrrev_b32 v5, 4, v1")
    A("v_xor_b32 v4, v4, v5")
    A("v_lshlrev_b32 v3, 7, v3")
    A("v_lshl_add_u32 v12, v4, 4, v3")
    A("s_lshl_b32 s39, s37, 13")
    A("v_add_u32 v12, s39, v12")
    A("v_xor_b32 v13, 64, v12")
    A("v_bfe_u32 v4, v1, 2, 2")
    A("v_and_b32 v3, 1, v5")
    A("v_lshlrev_b32 v3, 2, v3")
    A("s_lshl_b32 s39, s38, 2")
    A("v_xor_b32 v3, s39, v3")
    A("v_xor_b32 v3, v3, v4")
    A("v_lshlrev_b32 v6, 11, v5")
    A("v_lshl_add_u32 v6, v4, 8, v6")
    A("v_and_b32 v7, 3, v1")
    A("v_lshl_add_u32 v6, v7, 3, v6")
    A(f"v_add_u32 v6, {WB}, v6")
    for p in range(4):
        A(f"v_xor_b32 v7, {p}, v3")
        A(f"v_lshl_add_u32 v{14+p}, v7, 5, v6")
    ACC = 24
    FR = [88, 120]
    for i in range(64): A(f"v_mov_b32 v{ACC+i}, 0")
    def reads(ch):
        f = FR[ch % 2]
        xo = ((ch >> 1) % NX) * XS; wo = (ch % NW) * WS
        xs = [f"ds_read_b128 v[{f+4*tt}:{f+4*tt+3}], v{12 + (ch & 1)} offset:{xo + tt*2048}" for tt in range(4)]
        ws = []
        for p in range(4):
            ws.append(f"ds_read_b64_tr_b16 v[{f+16+4*p}:{f+17+4*p}], v{14+p} offset:{wo}")
            ws.append(f"ds_read_b64_tr_b16 v[{f+18+4*p}:{f+19+4*p}], v{14+p} offset:{wo+1024}")
        return xs + ws
    def mfmas(ch):
        f = FR[ch % 2]; lst = []
        for p in range(4):
            for tt in range(4):
                a = ACC + (tt * 4 + p) * 4
                lst.append(f"v_mfma_f32_16x16x32_bf16 v[{a}:{a+3}], v[{f+16+4*p}:{f+19+4*p}], v[{f+4*tt}:{f+4*tt+3}], v[{a}:{a+3}]")
        return lst
    A(f"s_waitcnt vmcnt({allowed(0)})")
    A("s_barrier")
    for x in reads(0): A(x)
    S.stamp()
    for j in range(NCH - 1):
        A(f"s_waitcnt vmcnt({allowed(j + 1)}) lgkmcnt(0)")
        A("s_barrier")
        iss = []
        if j == 0 and PRO == 1: iss += issue_w(3) + issue_x(2)
        if j == 0 and PRO == 2: iss += issue_w(2) + issue_w(3) + issue_x(2)
        if j + NW < NCH: iss += issue_w(j + NW)
        if j % 2 == 1 and (j >> 1) + NX < NCH // 2: iss += issue_x((j >> 1) + NX)
        rd = reads(j + 1); mf = mfmas(j)
        other = iss[:4] + rd[:6] + iss[4:] + rd[6:]
        for m in mf:
            A(m)
            for _ in range(2):
                if other: A(other.pop(0))
        assert not other
        if j == 7: S.stamp()
        if j == 12 and os.environ.get('FUSED') == '1':
            from gen_fused import srds_load
            srds_load(A)
        if os.environ.get('G1LATE') and j == int(os.environ['G1LATE']): A('s_setprio 1')
    S.stamp()
    A("s_waitcnt lgkmcnt(0)")
    for m in mfmas(NCH - 1): A(m)
    S.stamp()
    if os.environ.get("FUSED") == "1":
        from gen_fused import g1_early
        g1_early(A)
    A("v_lshlrev_b32 v14, 4, v1")
    A("s_lshl_b32 s40, s23, 1")
    A("s_add_u32 s40, s40, s37")
    A("s_mul_i32 s41, s40, 56")
    A("s_lshl_b32 s42, s24, 2")
    A("s_add_u32 s41, s41, s42")
    A("s_lshl_b32 s42, s38, 1")
    A("s_add_u32 s41, s41, s42")
    A("s_lshl_b32 s41, s41, 12")
    A("s_add_u32 s43, s41, 4096")
    NL2E = LOG2E ^ 0x80000000
    A(f"s_mov_b32 s46, {NL2E:#x}")
    A("s_mov_b32 s47, s46")
    A("s_mov_b32 s48, 1.0")
    A("s_mov_b32 s49, 1.0")
    P = 88
    def silu_pack(a, dst, t):
        for h in range(2):
            A(f"v_pk_mul_f32 v[{t+2*h}:{t+1+2*h}], v[{a+2*h}:{a+2*h+1}], s[46:47]")
        for k in range(4): A(f"v_exp_f32 v{t+k}, v{t+k}")
        for h in range(2):
            A(f"v_pk_add_f32 v[{t+2*h}:{t+1+2*h}], v[{t+2*h}:{t+1+2*h}], s[48:49]")
        for k in range(4): A(f"v_rcp_f32 v{t+k}, v{t+k}")
        for h in range(2):
            A(f"v_pk_mul_f32 v[{a+2*h}:{a+2*h+1}], v[{a+2*h}:{a+2*h+1}], v[{t+2*h}:{t+1+2*h}]")
        for h in range(2):
            A(f"v_cvt_pk_bf16_f32 v{dst+h}, v{a+2*h}, v{a+2*h+1}")
    n = 0
    for kk in range(2):
        for tt in range(4):
            d = P + (n % 8) * 4; n += 1
            for i in range(2):
                silu_pack(ACC + (tt * 4 + 2 * kk + i) * 4, d + 2 * i, 124 + 4 * i)
            A(f"buffer_store_dwordx4 v[{d}:{d+3}], v14, s[28:31], s{41 if kk == 0 else 43} offen offset:{tt*1024}{STORE_MOD}")
    S.stamp()
    if STAMPS:
        A("s_waitcnt vmcnt(0)"); S.stamp(); S.flush(8, 20)
    if os.environ.get("FUSED") == "1":
        from gen_fused import g1_tail
        g1_tail(A)
    else:
        A("s_endpgm")
```

```python
import os, sys
os.environ["FUSED"] = "1"
from gen_common import *

F2_OFF = 0x1120000; F2_SIZE = 24 * 256

def srds_load(A):
    A("s_load_dwordx2 s[92:93], s[0:1], 112")
    A("s_load_dwordx2 s[84:85], s[0:1], 120")

def srds_fix(A):
    A("s_mov_b32 s94, 256")
    A(f"s_mov_b32 s95, {SRD3:#x}")
    A(f"s_mov_b32 s86, {F2_SIZE}")
    A(f"s_mov_b32 s87, {SRD3:#x}")
    A(f"s_add_u32 s84, s84, {F2_OFF:#x}")
    A("s_addc_u32 s85, s85, 0")

def srds(A):
    srds_load(A)
    A("s_waitcnt lgkmcnt(0)")
    srds_fix(A)

def g1_early(A):
    srds_fix(A)
    A("s_cmp_eq_u32 s20, 0")
    A("s_cbranch_scc0 L_g1e")
    A("v_mov_b32 v221, 0")
    A("s_mov_b64 exec, 1")
    A("buffer_load_dword v220, v221, s[92:95], 0 offen sc1")
    A("s_mov_b64 exec, -1")
    A.label("L_g1e")

def spin(A, tag, mask, sleep, srd, x4=False, first_issued=False):
    A("s_mov_b32 s90, 0")
    A(f"s_mov_b64 exec, {mask}")
    if first_issued: A(f"s_branch L_wc_{tag}")
    A.label(f"L_wp_{tag}")
    if x4: A(f"buffer_load_dwordx4 v[64:67], v60, s[{srd}:{srd+3}], 0 offen sc1")
    else: A(f"buffer_load_dword v64, v60, s[{srd}:{srd+3}], 0 offen sc1")
    A("s_waitcnt vmcnt(0)")
    A.label(f"L_wc_{tag}")
    if x4:
        A("v_and_b32 v64, v64, v65")
        A("v_and_b32 v66, v66, v67")
        A("v_and_b32 v64, v64, v66")
    A("s_add_u32 s90, s90, 1")
    A("v_cmp_ne_u32 vcc, 1, v64")
    A("s_cmp_eq_u64 vcc, 0")
    A(f"s_cbranch_scc1 L_wg_{tag}")
    A("s_cmp_lt_u32 s90, 0x8000")
    A(f"s_sleep {sleep}")
    A(f"s_cbranch_scc1 L_wp_{tag}")
    A.label(f"L_wg_{tag}")
    A("s_mov_b64 exec, -1")

def signal(A, wave_s, off_s, tag):
    A("s_mov_b64 exec, -1")
    if tag != "g1": srds(A)
    A(f"s_cmp_eq_u32 s{wave_s}, 0")
    A(f"s_cbranch_scc0 L_sb_{tag}")
    A("v_mov_b32 v60, 0")
    A("s_mov_b64 exec, 1")
    if tag != "g1": A("buffer_load_dword v64, v60, s[92:95], 0 offen sc1")
    A("s_waitcnt vmcnt(0)")
    if tag == "g1": A("v_mov_b32 v64, v220")
    spin(A, "z" + tag, 1, 8, 92, first_issued=True)
    A.label(f"L_sb_{tag}")
    A("s_waitcnt vmcnt(0)")
    A("s_barrier")
    A(f"s_cmp_eq_u32 s{wave_s}, 0")
    A(f"s_cbranch_scc0 L_sig_{tag}")
    A(f"v_mov_b32 v60, s{off_s}")
    A("v_mov_b32 v61, 1")
    A("s_mov_b64 exec, 1")
    A("buffer_store_dword v61, v60, s[84:87], 0 offen sc1")
    A("s_mov_b64 exec, -1")
    A.label(f"L_sig_{tag}")

def g1_tail(A):
    if os.environ.get("G1LATE") or os.environ.get("G1PRIO"): A("s_setprio 0")
    A("s_lshl_b32 s50, s23, 8")
    A("s_lshl_b32 s51, s24, 2")
    A("s_add_u32 s50, s50, s51")
    A("s_add_u32 s50, s50, 2048")
    signal(A, 20, 50, "g1")
    A("s_branch L_g2_wait")

def prep_tail(A):
    A("s_lshl_b32 s50, s95, 8")
    A("s_lshr_b32 s51, s36, 6")
    A("s_lshl_b32 s51, s51, 3")
    A("s_add_u32 s51, s51, s92")
    A("s_lshl_b32 s51, s51, 2")
    A("s_add_u32 s50, s50, s51")
    signal(A, 37, 50, "prep")
    A("s_branch L_conv")

def conv_wait(A):
    A("s_lshr_b32 s91, s2, 5")
    A("s_lshl_b32 s91, s91, 8")
    A("s_cmp_eq_u32 s21, 0")
    A("s_cbranch_scc0 L_wd_conv")
    A("v_lshl_add_u32 v60, v1, 2, s91")
    spin(A, "conv", "0xffffffff", int(os.environ.get("CSLEEP", "8")), 84)
    A.label("L_wd_conv")
    A("s_barrier")

def conv_wait2(A):
    if os.environ.get("DEFER") != "1": return
    A("s_cmp_ge_u32 s2, 224")
    A("s_cbranch_scc1 L_wd_c2")
    A("s_cmp_eq_u32 s21, 0")
    A("s_cbranch_scc0 L_wd_c2")
    A("s_and_b32 s88, s2, 7")
    A("s_lshr_b32 s89, s2, 3")
    A("s_mul_i32 s90, s89, 37")
    A("s_lshr_b32 s90, s90, 8")
    A("s_mul_i32 s91, s90, 7")
    A("s_sub_u32 s89, s89, s91")
    A("s_lshr_b32 s91, s88, 1")
    A("s_lshl_b32 s91, s91, 2")
    A("s_add_u32 s90, s90, s91")
    A("s_and_b32 s88, s88, 1")
    A("s_mul_i32 s88, s88, 7")
    A("s_add_u32 s88, s88, s89")
    A("s_lshl_b32 s90, s90, 8")
    A("s_lshl_b32 s88, s88, 2")
    A("s_add_u32 s90, s90, s88")
    A("s_add_u32 s90, s90, 2048")
    A("v_mov_b32 v60, s90")
    spin(A, "c2", 1, int(os.environ.get("DSLEEP", "8")), 84)
    A.label("L_wd_c2")
    A("s_barrier")

def idle_entry(A):
    A.label("L_idle")
    srds(A)
    A("v_lshrrev_b32 v2, 6, v0")
    A("v_and_b32 v1, 63, v0")
    A("v_readfirstlane_b32 s20, v2")
    A("s_cmp_eq_u32 s20, 0")
    A("s_cbranch_scc0 L_g2_wait")
    A("v_mov_b32 v60, 0")
    A("s_cmp_eq_u32 s2, 480")
    A("s_cbranch_scc0 L_idle_w")
    for i in range(4): A(f"v_mov_b32 v{64+i}, 0")
    A("v_lshlrev_b32 v61, 4, v1")
    for i in range(6):
        A(f"s_mov_b32 s91, {i*1024}")
        A("buffer_store_dwordx4 v[64:67], v61, s[84:87], s91 offen sc1")
    A("s_waitcnt vmcnt(0)")
    A("v_mov_b32 v61, 1")
    A("s_mov_b64 exec, 1")
    A("buffer_store_dword v61, v60, s[92:95], 0 offen sc1")
    A("s_mov_b64 exec, -1")
    A.label("L_idle_w")
    spin(A, "zi", 1, 32, 92)

def g2_wait(A):
    A.label("L_g2_wait")
    A("v_lshrrev_b32 v2, 6, v0")
    A("v_and_b32 v1, 63, v0")
    A("v_readfirstlane_b32 s20, v2")
    A("s_sub_u32 s47, s2, 256")
    A("s_and_b32 s21, s47, 7")
    A("s_lshr_b32 s22, s47, 6")
    A("s_lshl_b32 s23, s21, 2")
    A("s_add_u32 s23, s23, s22")
    A("s_lshr_b32 s23, s23, 1")
    A("s_lshl_b32 s23, s23, 8")
    A("s_add_u32 s23, s23, 2048")
    A("s_cmp_eq_u32 s20, 0")
    A("s_cbranch_scc0 L_wd_g2")
    A("v_lshl_add_u32 v70, v1, 2, s23")
    A("v_lshrrev_b32 v60, 3, v1")
    A("v_lshlrev_b32 v60, 8, v60")
    A("v_and_b32 v61, 7, v1")
    A("v_lshl_add_u32 v60, v61, 4, v60")
    A("buffer_load_dwordx4 v[64:67], v60, s[84:87], 0 offen sc1")
    A("s_mov_b64 exec, 0x3fff")
    A("buffer_load_dword v71, v70, s[84:87], 0 offen sc1")
    A("s_waitcnt vmcnt(0)")
    A("s_mov_b64 exec, -1")
    A("v_and_b32 v64, v64, v65")
    A("v_and_b32 v66, v66, v67")
    A("v_and_b32 v64, v64, v66")
    A("v_cmp_ne_u32 s[88:89], 1, v64")
    A("v_mov_b32 v72, v60")
    A("v_mov_b32 v60, v70")
    A("v_mov_b32 v64, v71")
    spin(A, "g2a", "0x3fff", int(os.environ.get("GSLEEP", "8")), 84, first_issued=True)
    A("s_cmp_eq_u64 s[88:89], 0")
    A("s_cbranch_scc1 L_wd_g2")
    A("v_mov_b32 v60, v72")
    spin(A, "g2b", -1, int(os.environ.get("GSLEEP", "8")), 84, x4=True)
    A.label("L_wd_g2")
    A("s_barrier")

def fused():
    from gen_prep import gen_prep
    from gen_gemm1 import gen_gemm1
    from gen_k2 import gen_gemm2, gen_conv
    A = Asm()
    A("s_cmp_ge_u32 s2, 512")
    A("s_cbranch_scc1 L_exit")
    A("s_cmp_lt_u32 s2, 256")
    A("s_cbranch_scc1 L_prep")
    A("s_cmp_ge_u32 s2, 480")
    A("s_cbranch_scc1 L_idle")
    gen_gemm1(A)
    gen_prep(A)
    idle_entry(A)
    g2_wait(A)
    gen_gemm2(A)
    gen_conv(A)
    A.label("L_exit")
    A("s_endpgm")
    return A.finish()

def main(path):
    hdr = open("cdna_kernels/" + NAME + ".s.ref").read().split("\n")
    top = [l for l in hdr if l.startswith(";") and "@launch" not in l and "Override launch" not in l and "grid=ceil" not in l]
    top = top[:[i for i, l in enumerate(top) if "offset 120" in l][0] + 1]
    out = "\n".join(top) + "\n"
    kn = NAME + "_kernel"
    out += "; @launch grid=(512,1,1) block=(256,1,1) lds=81920\n"
    out += '.amdgcn_target "amdgcn-amd-amdhsa--gfx950"\n.text\n'
    out += kernel_header(kn) + fused() + "\n"
    out += kernel_desc(kn, 256, 102)
    open(path, "w").write(out)

if __name__ == "__main__":
    main(sys.argv[1])
```

```python
from gen_common import *
import os

CH_STRIDE = 37888; CP = 4160; U_OFF = 33280
RED = 0; AT_L = 65536; AT_S = 144

def gen_gemm2(A):
    A.label("L_gemm2")
    S = Stamper(A, 1, 60); S.start()
    A("s_load_dwordx4 s[4:7], s[0:1], 104")
    A("s_load_dwordx2 s[8:9], s[0:1], 120")
    A("v_lshrrev_b32 v2, 6, v0")
    A("v_and_b32 v1, 63, v0")
    A("v_readfirstlane_b32 s20, v2")
    A("s_sub_u32 s47, s2, 256")
    A("s_and_b32 s21, s47, 7")
    A("s_lshr_b32 s22, s47, 3")
    A("s_lshl_b32 s23, s21, 2")
    A("s_lshr_b32 s24, s22, 3")
    A("s_add_u32 s23, s23, s24")
    A("s_and_b32 s24, s22, 7")
    A("v_lshlrev_b32 v3, 4, v1")
    A(f"s_mul_i32 s25, s20, {14*4096}")
    A("v_add_u32 v4, s25, v3")
    A(f"s_mul_i32 s26, s23, {56*4096}")
    A(f"s_mul_i32 s27, s24, {56*4096}")
    A("s_waitcnt lgkmcnt(0)")
    A("s_add_u32 s12, s8, s26")
    A("s_addc_u32 s13, s9, 0")
    A(f"s_mov_b32 s14, {56*4096}")
    A(f"s_mov_b32 s15, {SRD3:#x}")
    A(f"s_add_u32 s16, s8, {W2F_OFF:#x}")
    A("s_addc_u32 s17, s9, 0")
    A("s_add_u32 s16, s16, s27")
    A("s_addc_u32 s17, s17, 0")
    A(f"s_mov_b32 s18, {56*4096}")
    A(f"s_mov_b32 s19, {SRD3:#x}")
    SET = [64, 96, 128, 160]; ACC = 192
    def issue(i):
        s = SET[i % 4]
        A(f"s_mov_b32 s40, {i*4096}")
        for k in range(4):
            A(f"buffer_load_dwordx4 v[{s+4*k}:{s+4*k+3}], v4, s[12:15], s40 offen offset:{k*1024}")
            A(f"buffer_load_dwordx4 v[{s+16+4*k}:{s+16+4*k+3}], v4, s[16:19], s40 offen offset:{k*1024}")
    if os.environ.get("FUSED") == "1":
        from gen_fused import g2_wait
        g2_wait(A)
    issue(0)
    NPF = 0
    if os.environ.get("NOPF2") != "1":
        NPF = 2
        A("s_mov_b32 s56, s8")
        A("s_mov_b32 s57, s9")
        A(f"s_mov_b32 s58, {W2F_OFF + W2F_SIZE:#x}")
        A(f"s_mov_b32 s59, {SRD3:#x}")
        A("s_lshl_b32 s60, s22, 6")
        A("s_add_u32 s60, s60, 1152")
        A(f"s_mul_i32 s61, s21, {4*229376}")
        A(f"s_mul_i32 s62, s20, {14*4096}")
        A(f"s_mov_b32 s63, {W2F_OFF - 4*229376:#x}")
        for k in range(2):
            A(f"s_add_u32 s64, s60, {2048*k}")
            A("v_add_u32 v40, s64, v1")
            A("v_mul_u32_u24 v41, 43691, v40")
            A("v_lshrrev_b32 v41, 24, v41")
            A("v_mul_u32_u24 v42, 384, v41")
            A("v_sub_u32 v42, v40, v42")
            A("v_lshrrev_b32 v43, 5, v42")
            A("v_and_b32 v42, 31, v42")
            A("v_lshlrev_b32 v42, 7, v42")
            A("v_lshl_add_u32 v42, v41, 12, v42")
            A("v_mul_u32_u24 v44, 229376, v43")
            A("v_mov_b32 v45, s61")
            A("v_mov_b32 v46, s63")
            A("v_cmp_gt_u32 vcc, 4, v43")
            A("v_cndmask_b32 v45, v46, v45, vcc")
            A("v_add3_u32 v42, v42, v44, v45")
            A(f"buffer_load_dword v{47+k}, v42, s[56:59], s62 offen")
    issue(1); issue(2)
    S.stamp()
    if os.environ.get("G2PRIO", "1") != "0": A("s_setprio " + os.environ.get("G2PRIO", "1"))
    srd_from(A, 28, 8, AT_OFF, AT_SIZE)
    srd_from(A, 32, 8, G_OFF, G_SIZE)
    srd_from(A, 36, 4, 0, 2048 * 1024)
    srd_from(A, 44, 8, FL_OFF, FL_SIZE)
    for i in range(64): A(f"v_mov_b32 v{ACC+i}, 0")
    A("v_and_b32 v11, 31, v1")
    A("v_lshlrev_b32 v11, 2, v11")
    A("s_lshl_b32 s43, s24, 5")
    A("s_add_u32 s43, s43, s23")
    A("s_lshl_b32 s43, s43, 7")
    A("v_and_b32 v5, 15, v1")
    A("s_lshl_b32 s41, s23, 6")
    A("s_lshl_b32 s42, s20, 4")
    A("s_add_u32 s41, s41, s42")
    A("v_add_u32 v6, s41, v5")
    A("v_lshlrev_b32 v7, 3, v6")
    A("v_lshrrev_b32 v13, 3, v1")
    A("v_and_b32 v14, 7, v1")
    A("v_lshlrev_b32 v15, 12, v13")
    A("v_lshl_add_u32 v15, v14, 4, v15")
    A("s_lshl_b32 s50, s24, 18")
    A("s_lshl_b32 s51, s20, 16")
    A("s_add_u32 s50, s50, s51")
    A("s_lshl_b32 s51, s23, 7")
    A("s_add_u32 s50, s50, s51")
    A("s_add_u32 s52, s50, 0x8000")
    def a_loads():
        A("buffer_load_dwordx4 v[16:19], v15, s[28:31], s50 offen sc1")
        A("buffer_load_dwordx4 v[20:23], v15, s[28:31], s52 offen sc1")
    for i in range(14):
        if i + 3 < 14: issue(i + 3)
        if i == 7: A("buffer_load_dword v12, v11, s[44:47], s43 offen sc1")
        left = 8 * (min(13, i + 3) - i)
        if 7 <= i <= 10: left += 1
        if i == 0: left += NPF
        if i >= 12: left += 3
        if i in (1, 7): S.stamp()
        A(f"s_waitcnt vmcnt({left})")
        if i == 11:
            A("v_cmp_eq_u32 vcc, 1, v12")
            A("s_cmp_eq_u64 vcc, -1")
            A("s_cselect_b32 s53, 1, 0")
            if os.environ.get("ONLY2") == "gemm2": A("s_mov_b32 s53, 1")
            a_loads()
            A("buffer_load_dwordx2 v[8:9], v7, s[32:35], 0 offen sc1")
        s = SET[i % 4]
        for dt in range(4 if not os.environ.get("NOMFMA") else 0):
            for tt in range(4):
                a = ACC + (dt * 4 + tt) * 4
                A(f"v_mfma_f32_16x16x32_bf16 v[{a}:{a+3}], v[{s+16+4*dt}:{s+16+4*dt+3}], v[{s+4*tt}:{s+4*tt+3}], v[{a}:{a+3}]")
    S.stamp()
    A("s_lshl_b32 s42, s20, 12")
    A("v_add_u32 v10, s42, v3")
    for tt in range(4):
        for dt in range(4):
            a = ACC + (dt * 4 + tt) * 4
            A(f"ds_write_b128 v10, v[{a}:{a+3}] offset:{RED + tt*16384 + dt*1024}")
    A("s_cmp_eq_u32 s53, 1")
    A("s_cbranch_scc1 L_g2_go")
    A("s_mov_b32 s48, 0")
    A.label("L_g2_poll")
    A("buffer_load_dword v12, v11, s[44:47], s43 offen sc1")
    A("s_waitcnt vmcnt(0)")
    A("v_cmp_eq_u32 vcc, 1, v12")
    A("s_add_u32 s48, s48, 1")
    A("s_cmp_eq_u64 vcc, -1")
    A("s_cbranch_scc1 L_g2_got")
    A("s_cmp_lt_u32 s48, 0x40000")
    A("s_sleep 4")
    A("s_cbranch_scc1 L_g2_poll")
    A.label("L_g2_got")
    a_loads()
    A.label("L_g2_go")
    S.stamp()
    A(f"v_mul_u32_u24 v13, {AT_S}, v13")
    A("v_lshl_add_u32 v13, v14, 4, v13")
    A(f"s_mul_i32 s51, s20, {16*AT_S}")
    A(f"s_add_u32 s51, s51, {AT_L}")
    A("v_add_u32 v13, s51, v13")
    A("s_waitcnt vmcnt(0)")
    A("ds_write_b128 v13, v[16:19]")
    A(f"ds_write_b128 v13, v[20:23] offset:{8*AT_S}")
    A("s_waitcnt lgkmcnt(0)")
    A("s_barrier")
    A("s_lshl_b32 s42, s20, 14")
    A("v_add_u32 v10, s42, v3")
    S0 = 64
    for src in range(4):
        for dt in range(4):
            r = S0 + (src * 4 + dt) * 4
            A(f"ds_read_b128 v[{r}:{r+3}], v10 offset:{RED + src*4096 + dt*1024}")
    A("v_lshrrev_b32 v13, 4, v1")
    A("v_lshlrev_b32 v13, 3, v13")
    A("v_bfe_u32 v14, v1, 2, 2")
    A("v_add_u32 v13, v13, v14")
    A(f"v_mul_u32_u24 v13, {AT_S}, v13")
    A("v_and_b32 v14, 3, v1")
    A("v_lshl_add_u32 v13, v14, 3, v13")
    A("s_lshl_b32 s51, s20, 5")
    A(f"s_add_u32 s51, s51, {AT_L}")
    A("v_add_u32 v13, s51, v13")
    for dt in range(4):
        A(f"ds_read_b64_tr_b16 v[{24+2*dt}:{25+2*dt}], v13 offset:{(32*(dt>>1) + 4*(dt&1))*AT_S}")
    A("s_waitcnt lgkmcnt(0)")
    B = 128
    for dt in range(4):
        for r in range(4):
            x = [S0 + (src * 4 + dt) * 4 + r for src in range(4)]
            A(f"v_add_f32 v{x[0]}, v{x[0]}, v{x[1]}")
            A(f"v_add_f32 v{x[2]}, v{x[2]}, v{x[3]}")
            A(f"v_add_f32 v{B+dt*4+r}, v{x[0]}, v{x[2]}")
    O = 160
    for dt in range(4):
        for h in range(2):
            b0, b1 = B + dt * 4 + 2 * h, B + dt * 4 + 2 * h + 1
            ar = 24 + 2 * dt + h
            A(f"v_cvt_pk_bf16_f32 v32, v{b0}, v{b1}")
            A("v_lshlrev_b32 v33, 16, v32")
            A("v_and_b32 v34, 0xffff0000, v32")
            A("v_mul_f32 v33, v9, v33")
            A("v_mul_f32 v34, v9, v34")
            A("v_cvt_pk_bf16_f32 v32, v33, v34")
            A(f"v_lshlrev_b32 v35, 16, v{ar}")
            A(f"v_and_b32 v36, 0xffff0000, v{ar}")
            A("v_mul_f32 v35, v8, v35")
            A("v_mul_f32 v36, v8, v36")
            A("v_cvt_pk_bf16_f32 v37, v35, v36")
            A("v_lshlrev_b32 v33, 16, v32")
            A("v_and_b32 v34, 0xffff0000, v32")
            A("v_lshlrev_b32 v35, 16, v37")
            A("v_and_b32 v36, 0xffff0000, v37")
            A("v_add_f32 v33, v33, v35")
            A("v_add_f32 v34, v34, v36")
            A(f"v_cvt_pk_bf16_f32 v{O+dt*2+h}, v33, v34")
    A("v_lshlrev_b32 v6, 10, v6")
    A("v_lshrrev_b32 v13, 4, v1")
    A("v_lshl_add_u32 v6, v13, 4, v6")
    A("s_lshl_b32 s51, s24, 7")
    A(f"buffer_store_dwordx4 v[{O}:{O+3}], v6, s[36:39], s51 offen")
    A(f"buffer_store_dwordx4 v[{O+4}:{O+7}], v6, s[36:39], s51 offen offset:64")
    S.stamp()
    S.flush(8, 20)
    A("s_endpgm")

def gen_conv(A):
    A.label("L_conv")
    S = Stamper(A, 1); S.start()
    A("s_setprio " + os.environ.get("CVPRIO", "2"))
    A("s_load_dwordx2 s[4:5], s[0:1], 64")
    A("s_load_dwordx2 s[10:11], s[0:1], 120")
    A("v_lshrrev_b32 v2, 6, v0")
    A("v_and_b32 v1, 63, v0")
    A("v_readfirstlane_b32 s21, v2")
    A("s_lshr_b32 s22, s21, 1")
    A("s_and_b32 s23, s21, 1")
    A("s_lshl_b32 s24, s2, 1")
    A("s_add_u32 s24, s24, s22")
    A(f"s_mul_i32 s25, s22, {CH_STRIDE}")
    A("v_lshlrev_b32 v3, 4, v1")
    A(f"s_mul_i32 s36, s24, {KR_STRIDE}")
    A("s_lshl_b32 s37, s23, 3")
    A("s_add_u32 s36, s36, s37")
    A(f"s_mul_i32 s38, s23, {4*CP}")
    A("s_add_u32 s38, s38, s25")
    A("s_lshl_b32 s40, s24, 12")
    A("s_lshl_b32 s41, s23, 11")
    A("s_add_u32 s40, s40, s41")
    A("s_add_u32 s42, s25, s41")
    A("s_waitcnt lgkmcnt(0)")
    A("s_lshl_b32 s26, s2, 2")
    A("s_load_dword s27, s[4:5], s26")
    srd_from(A, 12, 10, KR_OFF, KR_SIZE)
    srd_from(A, 16, 10, UT_OFF, UT_SIZE)
    for cc in range(4):
        A(f"s_add_u32 m0, s38, {cc*CP}")
        A(f"s_add_u32 s39, s36, {2*(cc & ~1) + (KR1 if cc & 1 else 0)}")
        for i in range(4):
            A(f"buffer_load_dwordx4 v3, s[12:15], s39 offen offset:{i*1024} lds")
    if os.environ.get("FUSED") == "1":
        from gen_fused import conv_wait
        conv_wait(A)
    A(f"s_add_u32 m0, s42, {U_OFF + 480}")
    A("buffer_load_dwordx4 v3, s[16:19], s40 offen lds")
    A("buffer_load_dwordx4 v3, s[16:19], s40 offen offset:1024 lds")
    if os.environ.get("FUSED") == "1":
        from gen_fused import conv_wait2
        conv_wait2(A)
    S.stamp()
    srd_from(A, 28, 10, AT_OFF, AT_SIZE)
    srd_from(A, 32, 10, FL_OFF, FL_SIZE)
    for i in range(4): A(f"v_mov_b32 v{4+i}, 0")
    A("s_cmp_eq_u32 s23, 0")
    A("s_cbranch_scc0 L_conv_z1")
    A(f"s_add_u32 s43, s25, {U_OFF}")
    A("v_add_u32 v8, s43, v3")
    A("v_cmp_gt_u32 vcc, 30, v1")
    A("s_and_saveexec_b64 s[44:45], vcc")
    A("ds_write_b128 v8, v[4:7]")
    A("s_mov_b64 exec, s[44:45]")
    A("s_branch L_conv_z2")
    A.label("L_conv_z1")
    A(f"v_mul_u32_u24 v8, {CP}, v1")
    A("s_add_u32 s43, s25, 4096")
    A("v_add_u32 v8, s43, v8")
    A("v_cmp_gt_u32 vcc, 8, v1")
    A("s_and_saveexec_b64 s[44:45], vcc")
    A("ds_write_b128 v8, v[4:7]")
    A("s_mov_b64 exec, s[44:45]")
    A.label("L_conv_z2")
    A("v_and_b32 v9, 15, v1")
    A("v_lshrrev_b32 v10, 4, v1")
    A("v_lshlrev_b32 v11, 5, v9")
    A("v_lshl_add_u32 v11, v10, 4, v11")
    A("s_lshl_b32 s47, s23, 8")
    A("s_add_u32 s47, s47, s25")
    A(f"s_add_u32 s43, s47, {U_OFF}")
    A("v_add_u32 v11, s43, v11")
    A("v_and_b32 v12, 7, v9")
    A("v_sub_u32 v12, 7, v12")
    A(f"v_mul_u32_u24 v12, {CP}, v12")
    A("v_lshrrev_b32 v13, 3, v9")
    A("v_lshlrev_b32 v13, 4, v13")
    A("v_sub_u32 v13, 16, v13")
    A("v_add_u32 v12, v12, v13")
    A("v_lshl_add_u32 v12, v10, 4, v12")
    A("v_add_u32 v12, s47, v12")
    A("v_lshlrev_b32 v13, 5, v9")
    A("v_lshl_add_u32 v13, v10, 3, v13")
    A("s_add_u32 s43, s42, %d" % (U_OFF + 480))
    A("v_add_u32 v14, s43, v13")
    A("s_lshl_b32 s46, s24, 12")
    A("s_add_u32 s46, s46, s41")
    A("s_lshl_b32 s48, s23, 12")
    A("s_add_u32 s49, s25, s48")
    A("v_add_u32 v8, s49, v3")
    A("s_xor_b32 s48, s48, 4096")
    A("s_add_u32 s49, s25, s48")
    A("v_add_u32 v15, s49, v3")
    ACC = 16
    SA = [48, 112]; SB = [80, 144]
    for i in range(32): A(f"v_mov_b32 v{ACC+i}, 0")
    A("s_lshl_b32 s47, s22, 4")
    A("s_waitcnt lgkmcnt(0)")
    A("s_lshr_b32 s27, s27, s47")
    A("s_lshl_b32 s27, s27, 16")
    A("s_waitcnt vmcnt(0)")
    S.stamp()
    A("s_barrier")
    S.stamp()
    def reads(e):
        a, b = SA[e % 2], SB[e % 2]
        lst = [f"ds_read_b128 v[{b}:{b+3}], v11 offset:{64*e}"]
        for p in range(8): lst.append(f"ds_read_b128 v[{a+4*p}:{a+4*p+3}], v12 offset:{512*(7-p) + 64*e}")
        for q in range(1, 8): lst.append(f"ds_read_b128 v[{b+4*q}:{b+4*q+3}], v11 offset:{512*q + 64*e}")
        return lst
    A("s_setprio " + os.environ.get("CVLOOP", "0"))
    rd = reads(0)
    for x in rd[:12]: A(x)
    A("s_waitcnt lgkmcnt(3)")
    first = rd[12:]
    for e in range(4):
        a, b = SA[e % 2], SB[e % 2]
        mf = []
        for q in range(8):
            for r in range(q, 8):
                c = ACC + 4 * r
                mf.append((q, f"v_mfma_f32_16x16x32_bf16 v[{c}:{c+3}], v[{a+4*(r-q)}:{a+4*(r-q)+3}], v[{b+4*q}:{b+4*q+3}], v[{c}:{c+3}]"))
        nxt = reads(e + 1) if e < 3 else []
        if e == 0:
            k = 0
            for idx, (q, m) in enumerate(mf):
                if idx < len(first): A(first[idx])
                if idx == 8: A("s_waitcnt lgkmcnt(0)")
                A(m)
                if idx >= 16 and nxt and (idx % 1 == 0): A(nxt.pop(0))
        else:
            A("s_waitcnt lgkmcnt(0)")
            for idx, (q, m) in enumerate(mf):
                A(m)
                if nxt: A(nxt.pop(0))
        assert not nxt
    S.stamp()
    A("s_setprio " + os.environ.get("CVPRIO", "2"))
    A("s_barrier")
    A("s_cmp_eq_u32 s23, 1")
    A("s_cbranch_scc1 L_conv_x1")
    FIN = 48
    for par in range(2):
        if par == 1: A.label("L_conv_x1")
        keep = 4 * par; send = 4 * (1 - par)
        for k in range(4):
            c = ACC + 4 * (send + k)
            A(f"ds_write_b128 v8, v[{c}:{c+3}] offset:{k*1024}")
        for k in range(4):
            A(f"ds_read_b64 v[{96+2*k}:{97+2*k}], v14 offset:{512*k}")
        A("s_waitcnt lgkmcnt(0)")
        A("s_barrier")
        for k in range(4):
            A(f"ds_read_b128 v[{64+4*k}:{67+4*k}], v15 offset:{k*1024}")
        A("s_waitcnt lgkmcnt(0)")
        for i in range(16):
            A(f"v_add_f32 v{FIN+i}, v{ACC+4*keep+i}, v{64+i}")
        if par == 0: A("s_branch L_conv_x2")
    A.label("L_conv_x2")
    for k in range(4):
        a = FIN + 4 * k
        for h in range(2):
            A(f"v_cvt_pk_bf16_f32 v110, v{a+2*h}, v{a+2*h+1}")
            A(f"v_lshlrev_b32 v111, 16, v{96+2*k+h}")
            A(f"v_and_b32 v112, 0xffff0000, v{96+2*k+h}")
            A("v_mul_f32 v111, s27, v111")
            A("v_mul_f32 v112, s27, v112")
            A("v_cvt_pk_bf16_f32 v111, v111, v112")
            A("v_lshlrev_b32 v112, 16, v110")
            A("v_and_b32 v110, 0xffff0000, v110")
            A("v_lshlrev_b32 v113, 16, v111")
            A("v_and_b32 v111, 0xffff0000, v111")
            A("v_add_f32 v112, v112, v113")
            A("v_add_f32 v110, v110, v111")
            A(f"v_cvt_pk_bf16_f32 v{120+2*k+h}, v112, v110")
        A(f"buffer_store_dwordx2 v[{120+2*k}:{121+2*k}], v13, s[28:31], s46 offen offset:{512*k} sc1")
    S.stamp()
    A("s_waitcnt vmcnt(0)")
    A("s_barrier")
    A("s_cmp_eq_u32 s21, 0")
    A("s_cbranch_scc0 L_conv_end")
    A("s_lshr_b32 s49, s2, 5")
    A("s_lshl_b32 s49, s49, 12")
    A("s_and_b32 s50, s2, 31")
    A("s_lshl_b32 s50, s50, 2")
    A("s_add_u32 s49, s49, s50")
    A("v_lshlrev_b32 v4, 7, v1")
    A("v_mov_b32 v5, 1")
    A("s_mov_b64 exec, 0xffffffff")
    A("buffer_store_dword v5, v4, s[32:35], s49 offen sc1")
    A.label("L_conv_end")
    A("s_mov_b64 exec, -1")
    S.stamp()
    S.flush(10, 21)
    A("s_endpgm")

def k2():
    A = Asm()
    import os
    only = os.environ.get("ONLY2", "")
    A("s_cmp_ge_u32 s2, 512")
    A("s_cbranch_scc1 L_k2_exit")
    A("s_cmp_lt_u32 s2, 256")
    A("s_cbranch_scc1 L_conv")
    if only == "conv": A("s_endpgm")
    gen_gemm2(A)
    if only == "gemm2":
        A.label("L_conv"); A("s_endpgm")
    else:
        gen_conv(A)
    A.label("L_k2_exit")
    A("s_endpgm")
    return A.finish()
```

```python
import os, sys
os.environ["FUSED"] = "1"
from gen_common import *

F2_OFF = 0x1120000; F2_SIZE = 24 * 256

def srds_load(A):
    A("s_load_dwordx2 s[92:93], s[0:1], 112")
    A("s_load_dwordx2 s[84:85], s[0:1], 120")

def srds_fix(A):
    A("s_mov_b32 s94, 256")
    A(f"s_mov_b32 s95, {SRD3:#x}")
    A(f"s_mov_b32 s86, {F2_SIZE}")
    A(f"s_mov_b32 s87, {SRD3:#x}")
    A(f"s_add_u32 s84, s84, {F2_OFF:#x}")
    A("s_addc_u32 s85, s85, 0")

def srds(A):
    srds_load(A)
    A("s_waitcnt lgkmcnt(0)")
    srds_fix(A)

def g1_early(A):
    srds_fix(A)
    A("s_cmp_eq_u32 s20, 0")
    A("s_cbranch_scc0 L_g1e")
    A("v_mov_b32 v221, 0")
    A("s_mov_b64 exec, 1")
    A("buffer_load_dword v220, v221, s[92:95], 0 offen sc1")
    A("s_mov_b64 exec, -1")
    A.label("L_g1e")

def spin(A, tag, mask, sleep, srd, x4=False, first_issued=False):
    A("s_mov_b32 s90, 0")
    A(f"s_mov_b64 exec, {mask}")
    if first_issued: A(f"s_branch L_wc_{tag}")
    A.label(f"L_wp_{tag}")
    if x4: A(f"buffer_load_dwordx4 v[64:67], v60, s[{srd}:{srd+3}], 0 offen sc1")
    else: A(f"buffer_load_dword v64, v60, s[{srd}:{srd+3}], 0 offen sc1")
    A("s_waitcnt vmcnt(0)")
    A.label(f"L_wc_{tag}")
    if x4:
        A("v_and_b32 v64, v64, v65")
        A("v_and_b32 v66, v66, v67")
        A("v_and_b32 v64, v64, v66")
    A("s_add_u32 s90, s90, 1")
    A("v_cmp_ne_u32 vcc, 1, v64")
    A("s_cmp_eq_u64 vcc, 0")
    A(f"s_cbranch_scc1 L_wg_{tag}")
    A("s_cmp_lt_u32 s90, 0x8000")
    A(f"s_sleep {sleep}")
    A(f"s_cbranch_scc1 L_wp_{tag}")
    A.label(f"L_wg_{tag}")
    A("s_mov_b64 exec, -1")

def signal(A, wave_s, off_s, tag):
    A("s_mov_b64 exec, -1")
    if tag != "g1": srds(A)
    A(f"s_cmp_eq_u32 s{wave_s}, 0")
    A(f"s_cbranch_scc0 L_sb_{tag}")
    A("v_mov_b32 v60, 0")
    A("s_mov_b64 exec, 1")
    if tag != "g1": A("buffer_load_dword v64, v60, s[92:95], 0 offen sc1")
    A("s_waitcnt vmcnt(0)")
    if tag == "g1": A("v_mov_b32 v64, v220")
    spin(A, "z" + tag, 1, 8, 92, first_issued=True)
    A.label(f"L_sb_{tag}")
    A("s_waitcnt vmcnt(0)")
    A("s_barrier")
    A(f"s_cmp_eq_u32 s{wave_s}, 0")
    A(f"s_cbranch_scc0 L_sig_{tag}")
    A(f"v_mov_b32 v60, s{off_s}")
    A("v_mov_b32 v61, 1")
    A("s_mov_b64 exec, 1")
    A("buffer_store_dword v61, v60, s[84:87], 0 offen sc1")
    A("s_mov_b64 exec, -1")
    A.label(f"L_sig_{tag}")

def g1_tail(A):
    if os.environ.get("G1LATE") or os.environ.get("G1PRIO"): A("s_setprio 0")
    A("s_lshl_b32 s50, s23, 8")
    A("s_lshl_b32 s51, s24, 2")
    A("s_add_u32 s50, s50, s51")
    A("s_add_u32 s50, s50, 2048")
    signal(A, 20, 50, "g1")
    A("s_branch L_gemm2")

def prep_tail(A):
    A("s_lshl_b32 s50, s95, 8")
    A("s_lshr_b32 s51, s36, 6")
    A("s_lshl_b32 s51, s51, 3")
    A("s_add_u32 s51, s51, s92")
    A("s_lshl_b32 s51, s51, 2")
    A("s_add_u32 s50, s50, s51")
    signal(A, 37, 50, "prep")
    A("s_branch L_conv")

def conv_wait(A):
    A("s_lshr_b32 s91, s2, 5")
    A("s_lshl_b32 s91, s91, 8")
    A("s_cmp_eq_u32 s21, 0")
    A("s_cbranch_scc0 L_wd_conv")
    A("v_lshl_add_u32 v60, v1, 2, s91")
    spin(A, "conv", "0xffffffff", int(os.environ.get("CSLEEP", "8")), 84)
    A.label("L_wd_conv")
    A("s_barrier")

def conv_wait2(A):
    if os.environ.get("DEFER") != "1": return
    A("s_cmp_ge_u32 s2, 224")
    A("s_cbranch_scc1 L_wd_c2")
    A("s_cmp_eq_u32 s21, 0")
    A("s_cbranch_scc0 L_wd_c2")
    A("s_and_b32 s88, s2, 7")
    A("s_lshr_b32 s89, s2, 3")
    A("s_mul_i32 s90, s89, 37")
    A("s_lshr_b32 s90, s90, 8")
    A("s_mul_i32 s91, s90, 7")
    A("s_sub_u32 s89, s89, s91")
    A("s_lshr_b32 s91, s88, 1")
    A("s_lshl_b32 s91, s91, 2")
    A("s_add_u32 s90, s90, s91")
    A("s_and_b32 s88, s88, 1")
    A("s_mul_i32 s88, s88, 7")
    A("s_add_u32 s88, s88, s89")
    A("s_lshl_b32 s90, s90, 8")
    A("s_lshl_b32 s88, s88, 2")
    A("s_add_u32 s90, s90, s88")
    A("s_add_u32 s90, s90, 2048")
    A("v_mov_b32 v60, s90")
    spin(A, "c2", 1, int(os.environ.get("DSLEEP", "8")), 84)
    A.label("L_wd_c2")
    A("s_barrier")

def idle_entry(A):
    A.label("L_idle")
    srds(A)
    A("v_lshrrev_b32 v2, 6, v0")
    A("v_and_b32 v1, 63, v0")
    A("v_readfirstlane_b32 s20, v2")
    A("s_cmp_eq_u32 s20, 0")
    A("s_cbranch_scc0 L_gemm2")
    A("v_mov_b32 v60, 0")
    A("s_cmp_eq_u32 s2, 480")
    A("s_cbranch_scc0 L_idle_w")
    for i in range(4): A(f"v_mov_b32 v{64+i}, 0")
    A("v_lshlrev_b32 v61, 4, v1")
    for i in range(6):
        A(f"s_mov_b32 s91, {i*1024}")
        A("buffer_store_dwordx4 v[64:67], v61, s[84:87], s91 offen sc1")
    A("s_waitcnt vmcnt(0)")
    A("v_mov_b32 v61, 1")
    A("s_mov_b64 exec, 1")
    A("buffer_store_dword v61, v60, s[92:95], 0 offen sc1")
    A("s_mov_b64 exec, -1")
    A.label("L_idle_w")
    spin(A, "zi", 1, 32, 92)

def g2_wait(A):
    A("s_lshr_b32 s91, s23, 1")
    A("s_lshl_b32 s91, s91, 8")
    A("s_add_u32 s91, s91, 2048")
    A("s_cmp_eq_u32 s20, 0")
    A("s_cbranch_scc0 L_wd_g2")
    A("v_lshl_add_u32 v70, v1, 2, s91")
    A("v_lshrrev_b32 v60, 3, v1")
    A("v_lshlrev_b32 v60, 8, v60")
    A("v_and_b32 v61, 7, v1")
    A("v_lshl_add_u32 v60, v61, 4, v60")
    A("buffer_load_dwordx4 v[64:67], v60, s[84:87], 0 offen sc1")
    A("s_mov_b64 exec, 0x3fff")
    A("buffer_load_dword v71, v70, s[84:87], 0 offen sc1")
    A("s_waitcnt vmcnt(0)")
    A("s_mov_b64 exec, -1")
    A("v_and_b32 v64, v64, v65")
    A("v_and_b32 v66, v66, v67")
    A("v_and_b32 v64, v64, v66")
    A("v_cmp_ne_u32 s[88:89], 1, v64")
    A("v_mov_b32 v72, v60")
    A("v_mov_b32 v60, v70")
    A("v_mov_b32 v64, v71")
    spin(A, "g2a", "0x3fff", int(os.environ.get("GSLEEP", "8")), 84, first_issued=True)
    A("s_cmp_eq_u64 s[88:89], 0")
    A("s_cbranch_scc1 L_wd_g2")
    A("v_mov_b32 v60, v72")
    spin(A, "g2b", -1, int(os.environ.get("GSLEEP", "8")), 84, x4=True)
    A.label("L_wd_g2")
    A("s_barrier")

def fused():
    from gen_prep import gen_prep
    from gen_gemm1 import gen_gemm1
    from gen_k2 import gen_gemm2, gen_conv
    A = Asm()
    A("s_cmp_ge_u32 s2, 512")
    A("s_cbranch_scc1 L_exit")
    A("s_cmp_lt_u32 s2, 256")
    A("s_cbranch_scc1 L_prep")
    A("s_cmp_ge_u32 s2, 480")
    A("s_cbranch_scc1 L_idle")
    gen_gemm1(A)
    gen_prep(A)
    idle_entry(A)
    gen_gemm2(A)
    gen_conv(A)
    A.label("L_exit")
    A("s_endpgm")
    return A.finish()

def main(path):
    hdr = open("cdna_kernels/" + NAME + ".s.ref").read().split("\n")
    top = [l for l in hdr if l.startswith(";") and "@launch" not in l and "Override launch" not in l and "grid=ceil" not in l]
    top = top[:[i for i, l in enumerate(top) if "offset 120" in l][0] + 1]
    out = "\n".join(top) + "\n"
    kn = NAME + "_kernel"
    out += "; @launch grid=(512,1,1) block=(256,1,1) lds=81920\n"
    out += '.amdgcn_target "amdgcn-amd-amdhsa--gfx950"\n.text\n'
    out += kernel_header(kn) + fused() + "\n"
    out += kernel_desc(kn, 256, 102)
    open(path, "w").write(out)

if __name__ == "__main__":
    main(sys.argv[1])
```

```python
import os, sys
os.environ["FUSED"] = "1"
from gen_common import *

F2_OFF = 0x1120000; PACE = int(os.environ.get('PACE', '0'))
F2_SIZE = (40 if PACE else 24) * 256

def srds_load(A):
    A("s_load_dwordx2 s[92:93], s[0:1], 112")
    A("s_load_dwordx2 s[84:85], s[0:1], 120")

def srds_fix(A):
    A("s_mov_b32 s94, 256")
    A(f"s_mov_b32 s95, {SRD3:#x}")
    A(f"s_mov_b32 s86, {F2_SIZE}")
    A(f"s_mov_b32 s87, {SRD3:#x}")
    A(f"s_add_u32 s84, s84, {F2_OFF:#x}")
    A("s_addc_u32 s85, s85, 0")

def srds(A):
    srds_load(A)
    A("s_waitcnt lgkmcnt(0)")
    srds_fix(A)

def pace_store(A):
    A("s_lshl_b32 s88, s23, 8")
    A("s_lshl_b32 s89, s24, 2")
    A("s_add_u32 s88, s88, s89")
    A(f"s_add_u32 s88, s88, {24*256}")
    A("v_mov_b32 v222, s88")
    A("v_mov_b32 v223, 1")
    A("buffer_store_dword v223, v222, s[84:87], 0 offen sc1")

def g1_early(A):
    srds_fix(A)
    A("s_cmp_eq_u32 s20, 0")
    A("s_cbranch_scc0 L_g1e")
    A("v_mov_b32 v221, 0")
    A("s_mov_b64 exec, 1")
    A("buffer_load_dword v220, v221, s[92:95], 0 offen sc1")
    if PACE == 2: pace_store(A)
    A("s_mov_b64 exec, -1")
    A.label("L_g1e")

def spin(A, tag, mask, sleep, srd, x4=False, first_issued=False, bound=0x8000):
    A("s_mov_b32 s90, 0")
    A(f"s_mov_b64 exec, {mask}")
    if first_issued: A(f"s_branch L_wc_{tag}")
    A.label(f"L_wp_{tag}")
    if x4: A(f"buffer_load_dwordx4 v[64:67], v60, s[{srd}:{srd+3}], 0 offen sc1")
    else: A(f"buffer_load_dword v64, v60, s[{srd}:{srd+3}], 0 offen sc1")
    A("s_waitcnt vmcnt(0)")
    A.label(f"L_wc_{tag}")
    if x4:
        A("v_and_b32 v64, v64, v65")
        A("v_and_b32 v66, v66, v67")
        A("v_and_b32 v64, v64, v66")
    A("s_add_u32 s90, s90, 1")
    A("v_cmp_ne_u32 vcc, 1, v64")
    A("s_cmp_eq_u64 vcc, 0")
    A(f"s_cbranch_scc1 L_wg_{tag}")
    A(f"s_cmp_lt_u32 s90, {bound:#x}")
    A(f"s_sleep {sleep}")
    A(f"s_cbranch_scc1 L_wp_{tag}")
    A.label(f"L_wg_{tag}")
    A("s_mov_b64 exec, -1")

def signal(A, wave_s, off_s, tag):
    A("s_mov_b64 exec, -1")
    if tag != "g1": srds(A)
    A(f"s_cmp_eq_u32 s{wave_s}, 0")
    A(f"s_cbranch_scc0 L_sb_{tag}")
    A("v_mov_b32 v60, 0")
    A("s_mov_b64 exec, 1")
    if tag != "g1": A("buffer_load_dword v64, v60, s[92:95], 0 offen sc1")
    A("s_waitcnt vmcnt(0)")
    if tag == "g1": A("v_mov_b32 v64, v220")
    spin(A, "z" + tag, 1, 8, 92, first_issued=True)
    A.label(f"L_sb_{tag}")
    A("s_waitcnt vmcnt(0)")
    A("s_barrier")
    A(f"s_cmp_eq_u32 s{wave_s}, 0")
    A(f"s_cbranch_scc0 L_sig_{tag}")
    A(f"v_mov_b32 v60, s{off_s}")
    A("v_mov_b32 v61, 1")
    A("s_mov_b64 exec, 1")
    A("buffer_store_dword v61, v60, s[84:87], 0 offen sc1")
    A("s_mov_b64 exec, -1")
    A.label(f"L_sig_{tag}")

def g1_tail(A):
    if PACE == 1:
        A("s_cmp_eq_u32 s20, 0")
        A("s_cbranch_scc0 L_g1p")
        A("s_mov_b64 exec, 1")
        pace_store(A)
        A("s_mov_b64 exec, -1")
        A.label("L_g1p")
    if os.environ.get("G1LATE") or os.environ.get("G1PRIO"): A("s_setprio 0")
    A("s_lshl_b32 s50, s23, 8")
    A("s_lshl_b32 s51, s24, 2")
    A("s_add_u32 s50, s50, s51")
    A("s_add_u32 s50, s50, 2048")
    signal(A, 20, 50, "g1")
    A("s_branch L_gemm2")

def prep_tail(A):
    A("s_lshl_b32 s50, s95, 8")
    A("s_lshr_b32 s51, s36, 6")
    A("s_lshl_b32 s51, s51, 3")
    A("s_add_u32 s51, s51, s92")
    A("s_lshl_b32 s51, s51, 2")
    A("s_add_u32 s50, s50, s51")
    signal(A, 37, 50, "prep")
    A("s_branch L_conv")

def conv_wait(A):
    A("s_lshr_b32 s91, s2, 5")
    A("s_lshl_b32 s91, s91, 8")
    A("s_cmp_eq_u32 s21, 0")
    A("s_cbranch_scc0 L_wd_conv")
    A("v_lshl_add_u32 v60, v1, 2, s91")
    spin(A, "conv", "0xffffffff", int(os.environ.get("CSLEEP", "8")), 84)
    A.label("L_wd_conv")
    A("s_barrier")

def conv_wait2(A):
    if os.environ.get("DEFER") != "1": return
    A("s_cmp_ge_u32 s2, 224")
    A("s_cbranch_scc1 L_wd_c2")
    A("s_cmp_eq_u32 s21, 0")
    A("s_cbranch_scc0 L_wd_c2")
    A("s_and_b32 s88, s2, 7")
    A("s_lshr_b32 s89, s2, 3")
    A("s_mul_i32 s90, s89, 37")
    A("s_lshr_b32 s90, s90, 8")
    A("s_mul_i32 s91, s90, 7")
    A("s_sub_u32 s89, s89, s91")
    A("s_lshr_b32 s91, s88, 1")
    A("s_lshl_b32 s91, s91, 2")
    A("s_add_u32 s90, s90, s91")
    A("s_and_b32 s88, s88, 1")
    A("s_mul_i32 s88, s88, 7")
    A("s_add_u32 s88, s88, s89")
    A("s_lshl_b32 s90, s90, 8")
    A("s_lshl_b32 s88, s88, 2")
    A("s_add_u32 s90, s90, s88")
    A(f"s_add_u32 s90, s90, {24*256 if PACE else 2048}")
    A("v_mov_b32 v60, s90")
    spin(A, "c2", 1, int(os.environ.get("DSLEEP", "8")), 84, bound=64)
    A.label("L_wd_c2")
    A("s_barrier")

def idle_entry(A):
    A.label("L_idle")
    srds(A)
    A("v_lshrrev_b32 v2, 6, v0")
    A("v_and_b32 v1, 63, v0")
    A("v_readfirstlane_b32 s20, v2")
    A("s_cmp_eq_u32 s20, 0")
    A("s_cbranch_scc0 L_gemm2")
    A("v_mov_b32 v60, 0")
    A("s_cmp_eq_u32 s2, 480")
    A("s_cbranch_scc0 L_idle_w")
    for i in range(4): A(f"v_mov_b32 v{64+i}, 0")
    A("v_lshlrev_b32 v61, 4, v1")
    for i in range(F2_SIZE // 1024):
        A(f"s_mov_b32 s91, {i*1024}")
        A("buffer_store_dwordx4 v[64:67], v61, s[84:87], s91 offen sc1")
    A("s_waitcnt vmcnt(0)")
    A("v_mov_b32 v61, 1")
    A("s_mov_b64 exec, 1")
    A("buffer_store_dword v61, v60, s[92:95], 0 offen sc1")
    A("s_mov_b64 exec, -1")
    A.label("L_idle_w")
    spin(A, "zi", 1, 32, 92)

def g2_wait(A):
    A("s_lshr_b32 s91, s23, 1")
    A("s_lshl_b32 s91, s91, 8")
    A("s_add_u32 s91, s91, 2048")
    A("s_cmp_eq_u32 s20, 0")
    A("s_cbranch_scc0 L_wd_g2")
    A("v_lshl_add_u32 v70, v1, 2, s91")
    A("v_lshrrev_b32 v60, 3, v1")
    A("v_lshlrev_b32 v60, 8, v60")
    A("v_and_b32 v61, 7, v1")
    A("v_lshl_add_u32 v60, v61, 4, v60")
    A("buffer_load_dwordx4 v[64:67], v60, s[84:87], 0 offen sc1")
    A("s_mov_b64 exec, 0x3fff")
    A("buffer_load_dword v71, v70, s[84:87], 0 offen sc1")
    A("s_waitcnt vmcnt(0)")
    A("s_mov_b64 exec, -1")
    A("v_and_b32 v64, v64, v65")
    A("v_and_b32 v66, v66, v67")
    A("v_and_b32 v64, v64, v66")
    A("v_cmp_ne_u32 s[88:89], 1, v64")
    A("v_mov_b32 v72, v60")
    A("v_mov_b32 v60, v70")
    A("v_mov_b32 v64, v71")
    spin(A, "g2a", "0x3fff", int(os.environ.get("GSLEEP", "8")), 84, first_issued=True)
    A("s_cmp_eq_u64 s[88:89], 0")
    A("s_cbranch_scc1 L_wd_g2")
    A("v_mov_b32 v60, v72")
    spin(A, "g2b", -1, int(os.environ.get("GSLEEP", "8")), 84, x4=True)
    A.label("L_wd_g2")
    A("s_barrier")

def fused():
    from gen_prep import gen_prep
    from gen_gemm1 import gen_gemm1
    from gen_k2 import gen_gemm2, gen_conv
    A = Asm()
    A("s_cmp_ge_u32 s2, 512")
    A("s_cbranch_scc1 L_exit")
    if os.environ.get("SWAP") == "1": A("s_xor_b32 s2, s2, 256")
    A("s_cmp_lt_u32 s2, 256")
    A("s_cbranch_scc1 L_prep")
    A("s_cmp_ge_u32 s2, 480")
    A("s_cbranch_scc1 L_idle")
    gen_gemm1(A)
    gen_prep(A)
    idle_entry(A)
    gen_gemm2(A)
    gen_conv(A)
    A.label("L_exit")
    A("s_endpgm")
    return A.finish()

def main(path):
    hdr = open("cdna_kernels/" + NAME + ".s.ref").read().split("\n")
    top = [l for l in hdr if l.startswith(";") and "@launch" not in l and "Override launch" not in l and "grid=ceil" not in l]
    top = top[:[i for i, l in enumerate(top) if "offset 120" in l][0] + 1]
    out = "\n".join(top) + "\n"
    kn = NAME + "_kernel"
    out += "; @launch grid=(512,1,1) block=(256,1,1) lds=81920\n"
    out += '.amdgcn_target "amdgcn-amd-amdhsa--gfx950"\n.text\n'
    out += kernel_header(kn) + fused() + "\n"
    out += kernel_desc(kn, 256, 102)
    open(path, "w").write(out)

if __name__ == "__main__":
    main(sys.argv[1])
```
